```python
import torch

def _softmax(x, axis=-1):
    return torch.softmax(x, dim=axis)
def _gelu(x):
    return torch.nn.functional.gelu(x, approximate="tanh")
def _silu(x):
    return torch.nn.functional.silu(x)
def _sigmoid(x):
    return torch.sigmoid(x)
def _layernorm(x, axis=-1, eps=1e-5):
    m = x.mean(dim=axis, keepdim=True)
    v = x.var(dim=axis, keepdim=True, unbiased=False)
    return (x - m) / torch.sqrt(v + eps)
def _scatter_add(tgt, idx, src, axis=0):
    return tgt.clone().index_add_(axis, idx, src)
def _segment_sum(src, seg, n):
    out = torch.zeros((n,) + src.shape[1:], dtype=src.dtype)
    return out.index_add_(0, seg, src)
def _pad(x, pw):
    flat = tuple(v for pair in reversed(pw) for v in pair)
    return torch.nn.functional.pad(x, flat)

kernel_name = 'standalone__glu_gated_swiglu__decode'

def setup_inputs():

    _w = (lambda a: (lambda t: t.to(torch.bfloat16) if t.is_floating_point() else t)(torch.as_tensor(a)))
    B, S, D, F = 8, 1, 1024, 3584
    return {
        "x": _w((lambda *s: torch.randn(*s, dtype=torch.bfloat16) * 0.05)(B, S, D)),
        "w1": _w((lambda *s: torch.randn(*s, dtype=torch.bfloat16) * 0.05)(D, F) * (2.0 / D) ** 0.5),
        "w3": _w((lambda *s: torch.randn(*s, dtype=torch.bfloat16) * 0.05)(D, F) * (2.0 / D) ** 0.5),
        "w2": _w((lambda *s: torch.randn(*s, dtype=torch.bfloat16) * 0.05)(F, D) * (2.0 / F) ** 0.5),
    }

def reference(x, w1, w3, w2):
    gate = torch.einsum("bsd,df->bsf", x, w1)
    up = torch.einsum("bsd,df->bsf", x, w3)
    h = _silu(gate) * up
    out = torch.einsum("bsf,fd->bsd", h, w2)
    return out
```

```python
KNAME = 'standalone__glu_gated_swiglu__decode_kernel'
class Asm:
    def __init__(self):
        self.lines = []
    def __call__(self, s):
        for l in s.strip('\n').split('\n'):
            self.lines.append(l.rstrip())
    def text(self):
        return '\n'.join(self.lines) + '\n'

def header(launches):
    s = '; generated\n'
    if len(launches) == 1 and launches[0][0] == KNAME:
        k, g, b, lds = launches[0]
        s += f'; @launch grid=({g},1,1) block=({b},1,1) lds={lds}\n'
    else:
        for k, g, b, lds in launches:
            s += f'; @launch kernel={k} grid=({g},1,1) block=({b},1,1) lds={lds}\n'
    s += '.amdgcn_target "amdgcn-amd-amdhsa--gfx950"\n.text\n'
    return s

def kstart(name):
    return f'.globl {name}\n.p2align 8\n.type {name},@function\n{name}:\n'

def kdesc(name, vgpr, sgpr, accum=None):
    if accum is None:
        accum = (vgpr + 3) // 4 * 4
    return f'''.amdhsa_kernel {name}
  .amdhsa_next_free_vgpr {vgpr}
  .amdhsa_next_free_sgpr {sgpr}
  .amdhsa_accum_offset {accum}
  .amdhsa_group_segment_fixed_size 0
  .amdhsa_kernarg_size 56
  .amdhsa_user_sgpr_count 2
  .amdhsa_user_sgpr_kernarg_segment_ptr 1
  .amdhsa_system_sgpr_workgroup_id_x 1
  .amdhsa_float_denorm_mode_32 3
.end_amdhsa_kernel
'''
RODATA = '.section .rodata,"a"\n.p2align 6\n'
```

```python
import sys
from genlib import *
P1_OFF = 0
P2_OFF = 1 << 20

def wgmap(a, sfb, sq):
    a(f'''
    s_and_b32 s12, s2, 7
    s_lshr_b32 s13, s2, 3
    s_mul_i32 s12, s12, 7
    s_lshr_b32 s14, s13, 2
    s_add_u32 s{sfb}, s12, s14           ; fb
    s_and_b32 s{sq}, s13, 3               ; q
''')

def transpose8(a, R, F, ncol_dw):
    for i in range(ncol_dw):
        for p in range(4):
            lo = R + (2*p)*ncol_dw + i
            hi = R + (2*p+1)*ncol_dw + i
            a(f'    v_perm_b32 v{F+4*(2*i)+p}, v{hi}, v{lo}, s40')
            a(f'    v_perm_b32 v{F+4*(2*i+1)+p}, v{hi}, v{lo}, s41')

def k1(a, nt):
    name = 'k1_kernel'
    a(kstart(name))
    a(f'''
    s_cmp_ge_u32 s2, 224
    s_cbranch_scc1 K1_end
    s_load_dwordx4 s[4:7], s[0:1], 0      ; x, w1
    s_load_dwordx2 s[8:9], s[0:1], 16     ; w3
    s_load_dwordx2 s[10:11], s[0:1], 48   ; ws
''')
    wgmap(a, 16, 17)
    a(f'''
    s_mov_b32 s40, 0x05040100
    s_mov_b32 s41, 0x07060302
    s_mov_b64 s[42:43], 7168
    s_mov_b64 s[44:45], {25*7168}
    v_lshrrev_b32 v1, 6, v0               ; wave
    v_and_b32 v2, 63, v0                  ; lane
    v_lshrrev_b32 v3, 4, v2               ; slab
    v_and_b32 v4, 7, v2
    v_lshlrev_b32 v5, 3, v1               ; wave*8
    v_add_u32 v5, v5, v3
    s_lshl_b32 s18, s17, 5                ; q*32
    v_add_u32 v5, s18, v5                 ; row/8
    v_mul_u32_u24 v6, {8*7168}, v5        ; row*7168
    v_lshlrev_b32 v7, 4, v4               ; g*16 bytes
    s_lshl_b32 s19, s16, 7                ; fb*128
    v_add3_u32 v6, v6, v7, s19
    v_lshlrev_b32 v8, 11, v4              ; b*2048
    v_lshl_add_u32 v8, v5, 4, v8          ; + row*2
    v_and_b32 v9, 8, v2
    v_cmp_ne_u32 vcc, 0, v9               ; mat
    s_waitcnt lgkmcnt(0)
    global_load_dwordx4 v[12:15], v8, s[4:5]
    global_load_dwordx4 v[16:19], v8, s[4:5] offset:64
    v_mov_b32 v10, s6
    v_mov_b32 v11, s7
    v_mov_b32 v20, s8
    v_mov_b32 v21, s9
    v_cndmask_b32 v10, v10, v20, vcc
    v_cndmask_b32 v11, v11, v21, vcc
    v_add_co_u32 v10, vcc, v10, v6
    s_nop 1
    v_addc_co_u32 v11, vcc, 0, v11, vcc
''')
    R = 32
    F = 96
    A = 128
    for t in range(2):
        for j in range(8):
            r = R + (t*8+j)*4
            a(f'    global_load_dwordx4 v[{r}:{r+3}], v[10:11], off {nt}')
            if not (t == 1 and j == 7):
                a(f'    v_lshl_add_u64 v[10:11], v[10:11], 0, {"s[44:45]" if j == 7 else "s[42:43]"}')
    for t in range(2):
        a(f'    s_waitcnt vmcnt({8*(1-t)})')
        transpose8(a, R + t*32, F, 4)
        a('    s_nop 1')
        for c in range(8):
            cin = '0' if t == 0 else f'v[{A+4*c}:{A+4*c+3}]'
            a(f'    v_mfma_f32_16x16x32_bf16 v[{A+4*c}:{A+4*c+3}], v[{F+4*c}:{F+4*c+3}], v[{12+4*t}:{15+4*t}], {cin}')
    a(f'''
    v_lshlrev_b32 v22, 12, v1
    v_lshl_add_u32 v22, v3, 7, v22
    v_lshl_add_u32 v22, v4, 4, v22
    v_lshlrev_b32 v23, 4, v0              ; t*16
    s_mov_b32 s20, 0x00ff00ff
    s_mov_b32 s21, 0x00ff00ff
    s_mov_b64 exec, s[20:21]
    s_nop 7
''')
    for c in range(8):
        a(f'    ds_write_b128 v22, v[{A+4*c}:{A+4*c+3}] offset:{c*512}')
    a(f'''
    s_mov_b64 exec, -1
    s_waitcnt lgkmcnt(0)
    s_barrier
    ds_read_b128 v[32:35], v23
    ds_read_b128 v[36:39], v23 offset:4096
    ds_read_b128 v[40:43], v23 offset:8192
    ds_read_b128 v[44:47], v23 offset:12288
    s_lshl_b32 s22, s16, 2
    s_add_u32 s22, s22, s17
    s_lshl_b32 s22, s22, 12
    v_add_u32 v23, s22, v23
    s_waitcnt lgkmcnt(2)
    v_pk_add_f32 v[32:33], v[32:33], v[36:37]
    v_pk_add_f32 v[34:35], v[34:35], v[38:39]
    s_waitcnt lgkmcnt(0)
    v_pk_add_f32 v[40:41], v[40:41], v[44:45]
    v_pk_add_f32 v[42:43], v[42:43], v[46:47]
    v_pk_add_f32 v[32:33], v[32:33], v[40:41]
    v_pk_add_f32 v[34:35], v[34:35], v[42:43]
    global_store_dwordx4 v23, v[32:35], s[10:11]
K1_end:
    s_endpgm
''')
    return name, 160, 48

def k2(a, nt):
    name = 'k2_kernel'
    a(kstart(name))
    a(f'''
    s_cmp_ge_u32 s2, 224
    s_cbranch_scc1 K2_end
    s_load_dwordx2 s[8:9], s[0:1], 24     ; w2
    s_load_dwordx2 s[10:11], s[0:1], 48   ; ws
''')
    wgmap(a, 16, 17)
    a(f'''
    s_mov_b32 s40, 0x05040100
    s_mov_b32 s41, 0x07060302
    v_lshrrev_b32 v1, 6, v0               ; wave
    v_and_b32 v2, 63, v0                  ; lane
    v_lshrrev_b32 v3, 4, v2               ; slab
    v_and_b32 v4, 15, v2                  ; n
    v_lshlrev_b32 v5, 11, v3              ; slab*2048
    v_lshl_add_u32 v5, v1, 7, v5          ; + w*128
    v_lshl_add_u32 v5, v4, 3, v5          ; + n*8
    s_lshl_b32 s18, s16, 17               ; fb*64*2048
    s_lshl_b32 s19, s17, 9                ; q*512
    s_add_u32 s18, s18, s19
    v_add_u32 v5, s18, v5
    s_lshl_b32 s20, s16, 14
    v_lshlrev_b32 v6, 4, v0
    v_add_u32 v6, s20, v6
    v_add_u32 v7, 0x2000, v6
    s_waitcnt lgkmcnt(0)
    global_load_dwordx4 v[8:11], v6, s[10:11]
    global_load_dwordx4 v[12:15], v7, s[10:11] offset:-4096
    global_load_dwordx4 v[16:19], v7, s[10:11]
    v_add_u32 v7, 0x1000, v7
    global_load_dwordx4 v[20:23], v7, s[10:11]
    s_mov_b32 s24, s8
    s_mov_b32 s25, s9
    s_mov_b32 s26, 7340032
    s_mov_b32 s27, 0x20000
''')
    R = 32
    F = 64
    A = 96
    for s in range(2):
        for j in range(8):
            r = R + (s*8+j)*2
            a(f'    s_mov_b32 s28, {(8*j+4*s)*2048}')
            a(f'    buffer_load_dwordx2 v[{r}:{r+1}], v5, s[24:27], s28 offen {nt}')
    a(f'''
    s_waitcnt vmcnt(16)
    v_pk_add_f32 v[8:9], v[8:9], v[12:13]
    v_pk_add_f32 v[10:11], v[10:11], v[14:15]
    v_pk_add_f32 v[16:17], v[16:17], v[20:21]
    v_pk_add_f32 v[18:19], v[18:19], v[22:23]
    v_pk_add_f32 v[8:9], v[8:9], v[16:17]
    v_pk_add_f32 v[10:11], v[10:11], v[18:19]
    v_cvt_pk_bf16_f32 v12, v8, v9
    v_cvt_pk_bf16_f32 v13, v10, v11
    v_mov_b32 v14, v12
    v_mov_b32 v15, v13
    s_nop 1
    v_permlane16_swap_b32 v12, v14
    v_permlane16_swap_b32 v13, v15
''')
    a(f'''
    s_nop 1
    v_lshlrev_b32 v16, 16, v12
    v_and_b32 v17, 0xffff0000, v12
    v_lshlrev_b32 v18, 16, v13
    v_and_b32 v19, 0xffff0000, v13
    v_lshlrev_b32 v20, 16, v14
    v_and_b32 v21, 0xffff0000, v14
    v_lshlrev_b32 v22, 16, v15
    v_and_b32 v23, 0xffff0000, v15
''')
    for r in range(4):
        a(f'    v_mul_f32 v{24+r}, 0xbfb8aa3b, v{16+r}')
    for r in range(4):
        a(f'    v_exp_f32 v{24+r}, v{24+r}')
    a('    s_nop 0')
    for r in range(4):
        a(f'    v_add_f32 v{24+r}, 1.0, v{24+r}')
    for r in range(4):
        a(f'    v_rcp_f32 v{24+r}, v{24+r}')
    a('    s_nop 0')
    for r in range(4):
        a(f'    v_mul_f32 v{24+r}, v{16+r}, v{24+r}')
    a(f'''
    v_cvt_pk_bf16_f32 v12, v24, v25
    v_cvt_pk_bf16_f32 v13, v26, v27
    v_lshlrev_b32 v16, 16, v12
    v_and_b32 v17, 0xffff0000, v12
    v_lshlrev_b32 v18, 16, v13
    v_and_b32 v19, 0xffff0000, v13
    v_mul_f32 v16, v16, v20
    v_mul_f32 v17, v17, v21
    v_mul_f32 v18, v18, v22
    v_mul_f32 v19, v19, v23
    v_cvt_pk_bf16_f32 v12, v16, v17
    v_cvt_pk_bf16_f32 v13, v18, v19
    v_and_b32 v24, 7, v0
    v_lshlrev_b32 v24, 7, v24
    v_lshrrev_b32 v25, 5, v0
    v_lshl_add_u32 v24, v25, 4, v24
    v_and_b32 v25, 8, v0
    v_add_u32 v24, v24, v25
    ds_write_b64 v24, v[12:13]
    v_and_b32 v25, 7, v2
    v_lshlrev_b32 v25, 7, v25
    v_lshl_add_u32 v25, v3, 4, v25
    s_waitcnt lgkmcnt(0)
    s_barrier
    ds_read_b128 v[8:11], v25
    ds_read_b128 v[12:15], v25 offset:64
    s_waitcnt vmcnt(0)
''')
    for s in range(2):
        transpose8(a, R + s*16, F + s*16, 2)
    a('    s_waitcnt lgkmcnt(0)')
    a('    s_nop 1')
    for s in range(2):
        for c in range(4):
            cin = '0' if s == 0 else f'v[{A+4*c}:{A+4*c+3}]'
            f = F + s*16 + 4*c
            a(f'    v_mfma_f32_16x16x32_bf16 v[{A+4*c}:{A+4*c+3}], v[{f}:{f+3}], v[{8+4*s}:{11+4*s}], {cin}')
    a(f'''
    s_lshl_b32 s20, s16, 15
    s_lshl_b32 s21, s17, 13
    s_add_u32 s20, s20, s21
    s_add_u32 s20, s20, {P2_OFF}
    v_lshlrev_b32 v24, 11, v1
    v_lshl_add_u32 v24, v3, 7, v24
    v_and_b32 v25, 7, v2
    v_lshl_add_u32 v24, v25, 4, v24
    v_add_u32 v24, s20, v24
    s_mov_b32 s20, 0x00ff00ff
    s_mov_b32 s21, 0x00ff00ff
    s_mov_b64 exec, s[20:21]
    s_nop 7
''')
    for c in range(4):
        a(f'    global_store_dwordx4 v24, v[{A+4*c}:{A+4*c+3}], s[10:11] offset:{c*512}')
    a('''
K2_end:
    s_endpgm
''')
    return name, 112, 48

def k3(a):
    name = 'k3_kernel'
    a(kstart(name))
    a(f'''
    s_cmp_ge_u32 s2, 64
    s_cbranch_scc1 K3_end
    s_load_dwordx2 s[8:9], s[0:1], 32     ; out
    s_load_dwordx2 s[10:11], s[0:1], 48   ; ws
    v_lshrrev_b32 v1, 6, v0               ; wave
    v_and_b32 v2, 63, v0                  ; lane
    s_lshl_b32 s12, s2, 2
    v_add_u32 v3, s12, v1                 ; rho
    v_and_b32 v4, 7, v2                   ; b
    v_lshrrev_b32 v5, 3, v2               ; p0 (0..7)
    v_lshlrev_b32 v6, 7, v3               ; rho*128
    v_lshl_add_u32 v6, v4, 4, v6
    v_lshl_add_u32 v6, v5, 15, v6
    v_add_u32 v6, {P2_OFF}, v6
    s_waitcnt lgkmcnt(0)
''')
    for i in range(7):
        a(f'    global_load_dwordx4 v[{16+4*i}:{19+4*i}], v6, s[10:11]')
        if i < 6:
            a(f'    v_add_u32 v6, {8*32768}, v6')
    for i in range(1, 7):
        a(f'    s_waitcnt vmcnt({6-i})')
        a(f'    v_pk_add_f32 v[16:17], v[16:17], v[{16+4*i}:{17+4*i}]')
        a(f'    v_pk_add_f32 v[18:19], v[18:19], v[{18+4*i}:{19+4*i}]')
    a('    s_nop 1')
    for r in range(4):
        a(f'    v_add_f32_dpp v{16+r}, v{16+r}, v{16+r} row_ror:8 row_mask:0xf bank_mask:0xf')
    for r in range(4):
        a(f'    v_mov_b32 v{20+r}, v{16+r}')
    a('    s_nop 1')
    for r in range(4):
        a(f'    v_permlane16_swap_b32 v{16+r}, v{20+r}')
    a('    s_nop 1')
    for r in range(4):
        a(f'    v_add_f32 v{16+r}, v{16+r}, v{20+r}')
    for r in range(4):
        a(f'    v_mov_b32 v{20+r}, v{16+r}')
    a('    s_nop 1')
    for r in range(4):
        a(f'    v_permlane32_swap_b32 v{16+r}, v{20+r}')
    a('    s_nop 1')
    for r in range(4):
        a(f'    v_add_f32 v{16+r}, v{16+r}, v{20+r}')
    a(f'''
    v_and_b32 v7, 3, v5                   ; r
    v_cmp_eq_u32 vcc, 1, v7
    s_nop 1
    v_cndmask_b32 v16, v16, v17, vcc
    v_cmp_eq_u32 vcc, 2, v7
    s_nop 1
    v_cndmask_b32 v16, v16, v18, vcc
    v_cmp_eq_u32 vcc, 3, v7
    s_nop 1
    v_cndmask_b32 v16, v16, v19, vcc
    v_cvt_pk_bf16_f32 v16, v16, v16
    v_lshrrev_b32 v8, 4, v3               ; (q,w)
    v_lshlrev_b32 v8, 6, v8
    v_and_b32 v9, 3, v3                   ; mh
    v_lshl_add_u32 v8, v9, 4, v8
    v_lshl_add_u32 v8, v7, 2, v8
    v_bfe_u32 v9, v3, 2, 2                ; c
    v_add_u32 v8, v8, v9                  ; col
    v_lshl_add_u32 v8, v4, 10, v8         ; + b*1024
    v_lshlrev_b32 v8, 1, v8
    v_cmp_gt_u32 vcc, 32, v2
    s_and_saveexec_b64 s[14:15], vcc
    global_store_short v8, v16, s[8:9]
K3_end:
    s_endpgm
''')
    return name, 48, 24

def gen(fname, nt):
    a = Asm()
    a(header([('k1_kernel', 224, 256, 16384), ('k2_kernel', 224, 256, 1024), ('k3_kernel', 64, 256, 0)]))
    ks = [k1(a, nt), k2(a, nt), k3(a)]
    a(RODATA)
    for n, v, s in ks:
        a('.p2align 6')
        a(kdesc(n, v, s))
    open(fname, 'w').write(a.text())
if __name__ == '__main__':
    gen('v1.s', '')
    gen('v1nt.s', 'nt')
```

```python
import sys
from genlib import *
P1_SAFE = 4 << 20
P2_OFF = 2 << 20
STAMP_OFF = 128 << 20
M1 = 0x3ff
M2 = 0xfff
LDS_H = 0
LDS_T = 1024

def orchain(a, dst, regs):
    regs = list(regs)
    a(f'    v_or3_b32 v{dst}, v{regs[0]}, v{regs[1]}, v{regs[2]}')
    i = 3
    while i + 1 < len(regs):
        a(f'    v_or3_b32 v{dst}, v{dst}, v{regs[i]}, v{regs[i+1]}')
        i += 2
    if i < len(regs):
        a(f'    v_or_b32 v{dst}, v{dst}, v{regs[i]}')

def gen(fname, nt='nt', stamps=False, warm=True, split=True, codepf=0x18, early1=None, w2late=False, auxsleep=10, aux2=16, dwait=-1, stag=0, stagsl=4, gdelay=0, dextra=0, rsleep=0, p2ld='sc1', p2st='sc1', pfflag='', pffirst=False, pad=0, pfwait=False, pfwide=False):
    a = Asm()
    a(header([(KNAME, 256, 384, 1088)]))
    a(kstart(KNAME))
    NST = 12
    lab = [0]
    def stamp(i):
        if stamps:
            a(f'    s_memrealtime s[{72+2*i}:{73+2*i}]')
    def skip_begin():
        lab[0] += 1
        if warm:
            a(f'    s_cbranch_execz L_sk{lab[0]}')
        return lab[0]
    def skip_end(l):
        if warm:
            a(f'L_sk{l}:')
    def wret():
        if warm:
            a('    s_cbranch_execz L_wret')
    X = 28; RAW = 48; FR = 208; A = 224
    T1 = 12; T2 = 16; VM1 = 20; VM2 = 21; VST = 22; VRD = 23; VOUT = 24; VZ = 25; VXA = 26
    G = 48
    R2 = 96; F2 = 128; A2 = 160; PA = 176
    VHW = 184; VHR = 185; VP2 = 186
    if stamps:
        for i in range(1, NST):
            a(f'    s_mov_b64 s[{72+2*i}:{73+2*i}], 0')
    stamp(0)
    def blkA():
        a(f'''
    s_cmp_ge_u32 s2, 256
    s_cbranch_scc1 L_exit
    s_load_dwordx8 s[4:11], s[0:1], 0     ; x, w1, w3, w2
    s_load_dwordx4 s[48:51], s[0:1], 32
    s_load_dwordx2 s[52:53], s[0:1], 48   ; ws
    s_memrealtime s[30:31]
''')
    def blkB():
        if codepf:
            a(f'''
    s_and_b32 s3, s2, {codepf}
    s_cbranch_scc1 L_nopf
    s_getpc_b64 s[20:21]
L_pc:
    v_lshlrev_b32 v5, 5, v0
    v_min_u32 v5, L_codeend-L_pc-4, v5
    global_load_dword v27, v5, s[20:21] {pfflag}
L_nopf:
''')
    if pffirst:
        blkB(); blkA()
    else:
        blkA(); blkB()
    a(f'''
    v_lshrrev_b32 v1, 6, v0               ; wave
    v_and_b32 v2, 63, v0                  ; lane
    v_readfirstlane_b32 s54, v1
    v_lshrrev_b32 v3, 4, v2
    v_and_b32 v4, 7, v2                   ; g / b
    s_and_b32 s12, s2, 7
    s_lshr_b32 s13, s2, 3                 ; idx
    s_add_u32 s14, s12, 3
    s_and_b32 s14, s14, 7
    s_lshr_b32 s15, s13, 2                ; j (7 -> extra)
    s_and_b32 s17, s13, 3                 ; q
    s_cmp_eq_u32 s15, 7
    s_cselect_b32 s15, s14, s15
    s_cselect_b32 s20, 4, 0
    s_add_u32 s17, s17, s20
    s_mul_i32 s12, s12, 7
    s_add_u32 s16, s12, s15               ; fb
    s_cmp_eq_u32 s15, s14
    s_cselect_b32 s18, 1, 0
''')
    if not split:
        a('''
    s_mov_b32 s18, 0
    s_cmp_ge_u32 s17, 4
    s_cselect_b32 s15, 7, 0
''')
    a(f'''
    s_mov_b32 s60, 0
    s_mov_b32 s62, 0
    v_mov_b32 v{VZ}, 0
    v_lshlrev_b32 v7, 4, v4               ; g*16 bytes
    s_lshl_b32 s19, s16, 7                ; fb*128
    s_cmp_lg_u32 s54, 0
    s_cbranch_scc1 L_q
    ; first row/8: normal q*32 + slab ; slow q*16 + slab
    s_sub_u32 s20, 5, s18
    s_lshl_b32 s21, s17, s20
    v_add_u32 v5, s21, v3                 ; row/8
    v_mul_u32_u24 v6, {8*7168}, v5        ; row*7168
    v_add3_u32 v6, v6, v7, s19            ; byte offset in matrix
    v_lshlrev_b32 v{VXA}, 11, v4          ; b*2048
    v_lshl_add_u32 v{VXA}, v5, 4, v{VXA}  ; + row*2
    s_lshl_b32 s29, s18, 8
    v_and_b32 v9, 8, v2
    v_cmp_ne_u32 vcc, 0, v9               ; mat
    s_mov_b64 s[42:43], 7168
    s_mov_b64 s[44:45], {25*7168}
    v_mov_b32 v10, 0
    v_mov_b32 v11, 0
    ds_write_b32 v{VZ}, v{VZ} offset:{LDS_T}   ; clear tag marker
    s_lshl_b32 s22, s16, 15
    s_lshl_b32 s23, s17, 12
    s_add_u32 s22, s22, s23
    v_lshl_add_u32 v{VST}, v3, 7, v7
    v_add_u32 v{VST}, s22, v{VST}         ; own P1 slot store addr (+c*512)
    s_cmp_lg_u32 s2, 0
    s_waitcnt lgkmcnt(0)
    s_cbranch_scc1 L_nonw
    s_or_b32 s31, s31, 0x80000000
    v_mov_b32 v8, s30
    v_mov_b32 v9, s31
    s_mov_b64 exec, 1
    global_store_dwordx2 v{VZ}, v[8:9], s[50:51] sc1
    s_mov_b64 exec, -1
L_nonw:
''' + ('    s_waitcnt vmcnt(0)\n' if pfwait else '') + f'''
    s_cmp_eq_u32 s15, 7
    s_cbranch_scc1 L_pre
    v_mov_b32 v10, s6
    v_mov_b32 v11, s7
    v_mov_b32 v8, s8
    v_mov_b32 v9, s9
    v_cndmask_b32 v10, v10, v8, vcc
    v_cndmask_b32 v11, v11, v9, vcc
    v_add_co_u32 v10, vcc, v10, v6
    s_sub_u32 s4, s4, s29                 ; slow WGs enter at tile 4: compensate imm offset 256
    s_subb_u32 s5, s5, 0
    v_addc_co_u32 v11, vcc, 0, v11, vcc
    s_cmp_eq_u32 s18, 1
    s_cbranch_scc1 L_iss4
''')
    def issue(t):
        sl = t % 5
        a(f'    global_load_dwordx4 v[{X+4*sl}:{X+4*sl+3}], v{VXA}, s[4:5] offset:{64*t}')
        for j in range(8):
            r = RAW + 32*sl + 4*j
            a(f'    global_load_dwordx4 v[{r}:{r+3}], v[10:11], off {nt}')
            if not (t == 7 and j == 7):
                a(f'    v_lshl_add_u64 v[10:11], v[10:11], 0, {"s[44:45]" if j == 7 else "s[42:43]"}')
    def mfma(c, f, sl):
        a(f'    v_mfma_f32_16x16x32_bf16 v[{A+4*c}:{A+4*c+3}], v[{f}:{f+3}], v[{X+4*sl}:{X+4*sl+3}], v[{A+4*c}:{A+4*c+3}]')
    def process(t):
        sl = t % 5
        for i in range(4):
            fb = FR + 8*(i & 1)
            for p in range(4):
                lo = RAW + 32*sl + (2*p)*4 + i
                hi = RAW + 32*sl + (2*p+1)*4 + i
                a(f'    v_perm_b32 v{fb+p}, v{hi}, v{lo}, s40')
                a(f'    v_perm_b32 v{fb+4+p}, v{hi}, v{lo}, s41')
            if i >= 1:
                pb = FR + 8*((i-1) & 1)
                mfma(2*(i-1), pb, sl); mfma(2*(i-1)+1, pb+4, sl)
        mfma(6, FR+8, sl); mfma(7, FR+12, sl)
    for t in range(4):
        issue(t)
    a('L_iss4:')
    issue(4)
    a('L_pre:')
    stamp(1)
    a(f'''
    s_mov_b32 s40, 0x05040100
    s_mov_b32 s41, 0x07060302
    s_mov_b32 s56, 0x00ff00ff
    s_mov_b32 s57, 0x00ff00ff
    s_mov_b64 s[58:59], -1
    v_mov_b32 v{VM1}, {M1}
    v_mov_b32 v{VM2}, {M2}
    s_mul_i32 s12, s2, 7168
    s_add_u32 s12, s12, {P2_OFF + 3072}
    v_lshlrev_b32 v{VRD}, 4, v2
    v_add_u32 v{VRD}, s12, v{VRD}
    s_lshr_b32 s12, s2, 4                 ; cb
    s_lshl_b32 s12, s12, 6
    s_and_b32 s13, s2, 3                  ; mh
    s_lshl_b32 s13, s13, 4
    s_add_u32 s12, s12, s13
    s_bfe_u32 s13, s2, 0x20002            ; c
    s_add_u32 s12, s12, s13
    v_lshl_add_u32 v{VOUT}, v3, 2, s12
    v_lshl_add_u32 v{VOUT}, v4, 10, v{VOUT}
    v_lshlrev_b32 v{VOUT}, 1, v{VOUT}
    s_cmp_eq_u32 s15, 7
    s_cbranch_scc1 L_idle
''')
    for i in range(32):
        a(f'    v_mov_b32 v{A+i}, 0')
    a('L_S0:')
    for t in range(3):
        a(f'''
    s_cmp_eq_u32 s18, 1
    s_cbranch_scc1 L_iss{t+5}
    s_waitcnt vmcnt(36)
''')
        process(t)
        a(f'L_iss{t+5}:')
        l = skip_begin()
        issue(t+5)
        skip_end(l)
    stamp(9)
    if not w2late:
        l = skip_begin()
        a('    s_barrier')
        skip_end(l)
    a('''
    s_cmp_eq_u32 s18, 1
    s_cbranch_scc1 L_pr4
    s_waitcnt vmcnt(36)
''')
    process(3)
    wret()
    a('L_S1:')
    a('L_pr4:')
    for t in (4, 5, 6):
        a(f'    s_waitcnt vmcnt({9*(7-t)})')
        process(t)
    if w2late:
        l = skip_begin()
        a('    s_barrier')
        skip_end(l)
    a(f'''
L_tagrd:
    ds_read_b128 v[{T1}:{T1+3}], v{VZ} offset:{LDS_T}
    ds_read_b128 v[{T2}:{T2+3}], v{VZ} offset:{LDS_T+16}
    s_waitcnt lgkmcnt(0)
    v_cmp_le_i32 vcc, 0, v{T1}
    s_cbranch_vccnz L_tagspin
''')
    sl = 2; FL = RAW + 32*3
    for p in range(4):
        a(f'    s_waitcnt vmcnt({6-2*p})')
        if p == 3: stamp(2)
        for i in range(4):
            lo = RAW + 32*sl + (2*p)*4 + i
            hi = RAW + 32*sl + (2*p+1)*4 + i
            a(f'    v_perm_b32 v{FL+4*(2*i)+p}, v{hi}, v{lo}, s40')
            a(f'    v_perm_b32 v{FL+4*(2*i+1)+p}, v{hi}, v{lo}, s41')
    for c in range(8):
        mfma(c, FL+4*c, sl)
    a('    s_mov_b64 exec, s[56:57]')
    for c in range(8):
        for r in range(4):
            a(f'    v_bfi_b32 v{A+4*c+r}, v{VM1}, v{T1+r}, v{A+4*c+r}')
        l = skip_begin()
        a(f'    global_store_dwordx4 v{VST}, v[{A+4*c}:{A+4*c+3}], s[52:53] offset:{c*512}')
        skip_end(l)
    a('    s_mov_b64 exec, s[58:59]')
    stamp(3)
    wret()
    a('    s_barrier')
    a('    s_barrier')
    stamp(5)
    if dwait < 0:
        a('    s_barrier')
        if dextra:
            a(f'    s_sleep {dextra}')
    elif dwait > 0:
        a(f'    s_sleep {dwait}')
    a('L_S3:')
    stamp(6)
    a('L_poll2:')
    l = skip_begin()
    for i in range(7):
        a(f'    global_load_dwordx4 v[{G+4*i}:{G+4*i+3}], v{VRD}, s[52:53] offset:{1024*i-3072} {p2ld}')
    skip_end(l)
    for i in range(7):
        a(f'    s_waitcnt vmcnt({6-i})')
        for k in range(4):
            a(f'    v_xor_b32 v{G+4*i+k}, v{T2+k}, v{G+4*i+k}')
        if i == 0:
            a(f'    v_or3_b32 v5, v{G}, v{G+1}, v{G+2}')
            a(f'    v_or_b32 v5, v5, v{G+3}')
        else:
            a(f'    v_or3_b32 v5, v5, v{G+4*i}, v{G+4*i+1}')
            a(f'    v_or3_b32 v5, v5, v{G+4*i+2}, v{G+4*i+3}')
            src = 8 if i > 1 else G
            a(f'    v_pk_add_f32 v[8:9], v[{src}:{src+1}], v[{G+4*i}:{G+4*i+1}]')
            a(f'    v_pk_add_f32 v[10:11], v[{src+2}:{src+3}], v[{G+4*i+2}:{G+4*i+3}]')
    a(f'''
    v_and_b32 v5, v{VM2}, v5
    v_cmp_ne_u32 vcc, 0, v5
    v_permlane32_swap_b32 v8, v10
    v_permlane32_swap_b32 v9, v11
    s_cbranch_vccnz L_retry2
''')
    stamp(7)
    a(f'''
    v_add_f32 v8, v8, v10
    v_add_f32 v9, v9, v11
    s_nop 1
    v_permlane16_swap_b32 v8, v9
    s_nop 0
    v_add_f32 v8, v8, v9
    s_nop 1
    v_add_f32_dpp v8, v8, v8 row_ror:8 row_mask:0xf bank_mask:0xf
    s_mov_b64 exec, s[56:57]
    v_cvt_pk_bf16_f32 v8, v8, v8
''')
    if warm:
        a('    s_cbranch_execz L_S4')
    a(f'    global_store_short v{VOUT}, v8, s[48:49]')
    if stamps:
        a('    s_waitcnt vmcnt(0)')
        stamp(8)
        a('    s_branch L_dump')
    a('''
L_end:
''')
    if stamps:
        a('''
    s_cmp_eq_u32 s15, 7
    s_cbranch_scc1 L_dump
''' + ('    s_barrier\n' if dwait < 0 else '') + '''
    s_sleep 60
L_dump:
    s_mov_b64 exec, -1
    s_waitcnt lgkmcnt(0)
    s_add_u32 s92, s60, s72
    s_addc_u32 s93, 0, s73
    s_mov_b64 s[94:95], s[72:73]
''')
        for i in range(2*NST):
            a(f'    v_mov_b32 v{64+i}, s{72+i}')
        a(f'''
    s_lshl_b32 s12, s54, 8
    s_add_u32 s12, s12, s2
    s_mul_i32 s12, s12, {NST*8}
    s_add_u32 s12, s12, {STAMP_OFF}
    v_mov_b32 v5, s12
    s_mov_b64 exec, 1
''')
        for i in range(NST//2):
            a(f'    global_store_dwordx4 v5, v[{64+4*i}:{67+4*i}], s[52:53] offset:{16*i}')
    a('''
L_exit:
    s_endpgm
L_retry2:
''' + (f'    s_sleep {rsleep}\n' if rsleep else '') + '''
    s_add_u32 s60, s60, 1
    s_cmp_lt_u32 s60, 0x40000
    s_cbranch_scc1 L_poll2
    s_endpgm
L_tagspin:
    s_sleep 1
    s_add_u32 s60, s60, 1
    s_cmp_lt_u32 s60, 0x400000
    s_cbranch_scc1 L_tagrd
    s_endpgm
''')
    def tagcalc():
        a(f'''
    s_getreg_b32 s20, hwreg(HW_REG_XCC_ID)
    v_and_b32 v{T1}, {M1}, v28
    v_bfe_u32 v{T1+1}, v28, 10, 10
    v_bfe_u32 v{T1+2}, v28, 20, 10
    v_alignbit_b32 v5, v29, v28, 30
    s_and_b32 s20, s20, 7
    s_lshl_b32 s20, s20, 7
    v_and_b32 v5, {M1}, v5
    v_xor_b32 v{T1+3}, s20, v5
    v_and_b32 v{T2}, {M2}, v28
    v_bfe_u32 v{T2+1}, v28, 12, 12
    v_alignbit_b32 v5, v29, v28, 24
    v_and_b32 v{T2+2}, {M2}, v5
    v_bfe_u32 v{T2+3}, v29, 4, 12
''')
    a(f'''
L_idle:
    s_sleep 40
    global_load_dwordx2 v[28:29], v{VZ}, s[50:51] sc1
    s_waitcnt vmcnt(0)
    s_add_u32 s60, s60, 1
    s_cmp_lt_u32 s60, 0x40000
    s_cbranch_scc0 L_exit
    v_cmp_lt_i32 vcc, -1, v29
    s_cbranch_vccnz L_idle
''')
    tagcalc()
    stamp(2); stamp(3); stamp(5)
    a('    s_sleep 40\n    s_branch L_S3')
    a('L_q:')
    a(f'''
    s_cmp_lg_u32 s54, 5
    s_cbranch_scc1 L_q1
    s_waitcnt lgkmcnt(0)
    s_sleep {auxsleep}
    global_load_dwordx2 v[28:29], v{VZ}, s[50:51] sc1
L_q1:
''')
    if warm:
        a(f'''
    s_mov_b32 s63, s18
    s_mov_b64 s[56:57], 0
    s_mov_b64 s[58:59], 0
    s_mov_b32 s18, 0
    s_mov_b32 s61, 0
    s_mov_b64 exec, 0
    s_cmp_eq_u32 s54, 1
    s_cbranch_scc1 L_S0
    s_cmp_eq_u32 s54, 2
    s_cbranch_scc1 L_S1
    s_cmp_eq_u32 s54, 3
    s_cbranch_scc1 L_S3
    s_cmp_eq_u32 s54, 4
    s_cbranch_scc1 L_S2
    s_sleep {aux2}
L_wret:
    s_mov_b64 exec, -1
    s_mov_b32 s18, s63
''')
    stamp(1)
    a(f'''
    s_cmp_eq_u32 s15, 7
    s_cbranch_scc1 L_end
    s_cmp_eq_u32 s54, 5
    s_cbranch_scc1 L_aux
    v_subrev_u32 v1, 1, v1                ; w
    v_subrev_u32 v8, 64, v0               ; t = tid - 64
    v_lshlrev_b32 v9, 4, v8               ; t*16
    s_lshl_b32 s22, s16, 15
    v_add_u32 v9, s22, v9
    s_lshl_b32 s23, s17, 12
    s_lshl_b32 s20, s18, 14
    s_add_u32 s20, s20, 0x3fff
''')
    for i in range(8):
        a(f'    v_add_u32 v{PA+i}, s23, v9')
        if i < 7:
            a('    s_add_u32 s23, s23, 4096\n    s_and_b32 s23, s23, s20')
    a(f'''
    v_and_b32 v5, 15, v2
    v_lshlrev_b32 v24, 12, v3
    v_lshl_add_u32 v24, v1, 7, v24        ; + w*128
    v_lshl_add_u32 v24, v5, 3, v24        ; + n*8
    s_sub_u32 s21, 6, s18
    s_lshl_b32 s21, s17, s21              ; cb0*16
    s_lshl_b32 s22, s16, 17               ; fb*64*2048
    s_lshl_b32 s23, s21, 3                ; q*512 or q*256
    s_add_u32 s22, s22, s23
    s_cmp_ge_u32 s54, 3
    s_cselect_b32 s61, s18, 0
    s_cmp_lg_u32 s61, 0
    s_cselect_b32 s26, 0, 7340032
    s_mov_b32 s27, 0x20000
    s_mov_b32 s40, 0x05040100
    s_mov_b32 s41, 0x07060302
    s_mov_b32 s56, 0x00ff00ff
    s_mov_b32 s57, 0x00ff00ff
    s_mov_b64 s[58:59], -1
    v_mov_b32 v{VM1}, {M1}
    v_mov_b32 v{VM2}, {M2}
    v_lshlrev_b32 v10, 7, v4
    v_lshl_add_u32 v11, v1, 4, v10
    v_lshrrev_b32 v5, 5, v2
    v_lshl_add_u32 v11, v5, 6, v11
    v_and_b32 v5, 8, v2
    v_add_u32 v11, v11, v5
    v_and_b32 v5, 1, v3
    v_lshl_add_u32 v{VHW}, v5, 2, v11
    v_lshl_add_u32 v{VHR}, v3, 4, v10
    v_lshl_add_u32 v{VP2}, v1, 4, v3
    v_add_u32 v{VP2}, s21, v{VP2}
    v_mul_u32_u24 v{VP2}, 7168, v{VP2}
    s_add_u32 s20, s19, {P2_OFF}
    v_add3_u32 v{VP2}, v{VP2}, v7, s20
    v_add_u32 v{VP2+1}, {4*7168}, v{VP2}
    v_add_u32 v{VP2+2}, {8*7168}, v{VP2}
    v_add_u32 v{VP2+3}, {12*7168}, v{VP2}
    s_waitcnt lgkmcnt(0)
    s_mov_b32 s24, s10
    s_mov_b32 s25, s11
''')
    if early1 is not None:
        a(f'    global_load_dwordx4 v[{G}:{G+3}], v{PA}, s[52:53] {early1}')
    a('    s_barrier')
    for j in range(8):
        for s in range(2):
            r = R2 + (s*8+j)*2
            a(f'    buffer_load_dwordx2 v[{r}:{r+1}], v24, s[24:27], s22 offen offset:{2048*s} {nt}')
        if j < 7:
            a(f'    s_add_u32 s22, s22, 16384')
    stamp(2)
    a('''
    s_cmp_eq_u32 s18, 1
    s_barrier
''')
    stamp(3)
    if gdelay:
        a(f'    s_sleep {gdelay}')
    for i in range(4):
        a(f'    global_load_dwordx4 v[{G+4*i}:{G+4*i+3}], v{PA+i}, s[52:53] sc1')
    a('    s_cbranch_scc1 L_slow2')
    for k in range(stag):
        a(f'    s_sleep {stagsl}')
        for i in range(4):
            a(f'    global_load_dwordx4 v[{G+4*i}:{G+4*i+3}], v{PA+i}, s[52:53] sc1')
    a(f'''
L_S2:
    ds_read_b128 v[{T1}:{T1+3}], v{VZ} offset:{LDS_T}
    ds_read_b128 v[{T2}:{T2+3}], v{VZ} offset:{LDS_T+16}
    s_waitcnt vmcnt({4*(stag+1)})
''')
    stamp(4)
    def w2trans():
        for s in range(2):
            for i in range(2):
                for p in range(4):
                    lo = R2 + s*16 + (2*p)*2 + i
                    hi = R2 + s*16 + (2*p+1)*2 + i
                    a(f'    v_perm_b32 v{F2+s*16+4*(2*i)+p}, v{hi}, v{lo}, s40')
                    a(f'    v_perm_b32 v{F2+s*16+4*(2*i+1)+p}, v{hi}, v{lo}, s41')
    w2trans()
    a(f'''
    s_waitcnt lgkmcnt(0)
    v_and_b32 v{T1}, v{VM1}, v{T1}
L_poll1:
    s_waitcnt vmcnt(0)
''')
    for i in range(4):
        for k in range(4):
            a(f'    v_xor_b32 v{G+4*i+k}, v{T1+k}, v{G+4*i+k}')
    orchain(a, 5, range(G, G+16))
    a(f'''
    v_pk_add_f32 v[8:9], v[{G}:{G+1}], v[{G+4}:{G+5}]
    v_and_b32 v5, v{VM1}, v5
    v_pk_add_f32 v[10:11], v[{G+2}:{G+3}], v[{G+6}:{G+7}]
    v_cmp_ne_u32 vcc, 0, v5
    v_pk_add_f32 v[28:29], v[{G+8}:{G+9}], v[{G+12}:{G+13}]
    v_pk_add_f32 v[30:31], v[{G+10}:{G+11}], v[{G+14}:{G+15}]
    s_cbranch_vccnz L_retry1
L_hcalc:
''')
    stamp(9)
    a(f'''
    v_pk_add_f32 v[8:9], v[8:9], v[28:29]
    v_pk_add_f32 v[10:11], v[10:11], v[30:31]
    v_cvt_pk_bf16_f32 v8, v8, v9
    v_cvt_pk_bf16_f32 v9, v10, v11
    s_nop 1
    v_permlane16_swap_b32 v8, v9
    s_nop 0
    v_lshlrev_b32 v28, 16, v8
    v_and_b32 v29, 0xffff0000, v8
    v_mul_f32 v30, 0xbfb8aa3b, v28
    v_mul_f32 v31, 0xbfb8aa3b, v29
    v_exp_f32 v30, v30
    v_exp_f32 v31, v31
    v_lshlrev_b32 v10, 16, v9
    v_and_b32 v11, 0xffff0000, v9
    v_add_f32 v30, 1.0, v30
    v_add_f32 v31, 1.0, v31
    v_rcp_f32 v30, v30
    v_rcp_f32 v31, v31
    s_nop 0
    v_mul_f32 v30, v28, v30
    v_mul_f32 v31, v29, v31
    v_cvt_pk_bf16_f32 v8, v30, v31
    v_lshlrev_b32 v28, 16, v8
    v_and_b32 v29, 0xffff0000, v8
    v_mul_f32 v28, v28, v10
    v_mul_f32 v29, v29, v11
    v_cvt_pk_bf16_f32 v8, v28, v29
    ds_write_b32 v{VHW}, v8 offset:{LDS_H}
    s_cmp_lg_u32 s61, 0
    s_waitcnt lgkmcnt(0)
''')
    l = skip_begin()
    a('    s_barrier')
    skip_end(l)
    stamp(5)
    a(f'''
    ds_read_b128 v[8:11], v{VHR} offset:{LDS_H}
    ds_read_b128 v[28:31], v{VHR} offset:{LDS_H+64}
    s_cbranch_scc1 L_end
    s_waitcnt lgkmcnt(1)
''')
    for s in range(2):
        if s == 1:
            a('    s_waitcnt lgkmcnt(0)')
        hb = 8 if s == 0 else 28
        for c in range(4):
            cin = '0' if s == 0 else f'v[{A2+4*c}:{A2+4*c+3}]'
            f = F2 + s*16 + 4*c
            a(f'    v_mfma_f32_16x16x32_bf16 v[{A2+4*c}:{A2+4*c+3}], v[{f}:{f+3}], v[{hb}:{hb+3}], {cin}')
    a(f'''
    s_mov_b64 exec, s[56:57]
    s_nop 3
''')
    for c in range(4):
        for r in range(4):
            a(f'    v_bfi_b32 v{A2+4*c+r}, v{VM2}, v{T2+r}, v{A2+4*c+r}')
        if c < 3:
            l = skip_begin()
        else:
            wret()
        a(f'    global_store_dwordx4 v{VP2+c}, v[{A2+4*c}:{A2+4*c+3}], s[52:53] {p2st}')
        if c < 3:
            skip_end(l)
    stamp(6)
    if dwait < 0 or stamps:
        a('    s_waitcnt vmcnt(0)')
    stamp(7)
    if stamps:
        a('    s_branch L_end')
    a('    s_endpgm')
    a('L_slow2:')
    for i in range(4, 8):
        a(f'    global_load_dwordx4 v[{G+4*i}:{G+4*i+3}], v{PA+i}, s[52:53] sc1')
    for k in range(stag):
        a(f'    s_sleep {stagsl}')
        for i in range(8):
            a(f'    global_load_dwordx4 v[{G+4*i}:{G+4*i+3}], v{PA+i}, s[52:53] sc1')
    a(f'''
L_S4:
    ds_read_b128 v[{T1}:{T1+3}], v{VZ} offset:{LDS_T}
    ds_read_b128 v[{T2}:{T2+3}], v{VZ} offset:{LDS_T+16}
    s_waitcnt vmcnt({8*(stag+1)})
''')
    stamp(4)
    w2trans()
    a(f'''
    s_waitcnt lgkmcnt(0)
    v_and_b32 v{T1}, v{VM1}, v{T1}
L_poll1s:
    s_waitcnt vmcnt(0)
''')
    for i in range(8):
        for k in range(4):
            a(f'    v_xor_b32 v{G+4*i+k}, v{T1+k}, v{G+4*i+k}')
    orchain(a, 5, range(G, G+32))
    a(f'''
    v_pk_add_f32 v[8:9], v[{G}:{G+1}], v[{G+4}:{G+5}]
    v_and_b32 v5, v{VM1}, v5
    v_pk_add_f32 v[10:11], v[{G+2}:{G+3}], v[{G+6}:{G+7}]
    v_cmp_ne_u32 vcc, 0, v5
    v_pk_add_f32 v[28:29], v[{G+8}:{G+9}], v[{G+12}:{G+13}]
    v_pk_add_f32 v[30:31], v[{G+10}:{G+11}], v[{G+14}:{G+15}]
    v_pk_add_f32 v[8:9], v[8:9], v[{G+16}:{G+17}]
    v_pk_add_f32 v[10:11], v[10:11], v[{G+18}:{G+19}]
    v_pk_add_f32 v[28:29], v[28:29], v[{G+20}:{G+21}]
    v_pk_add_f32 v[30:31], v[30:31], v[{G+22}:{G+23}]
    v_pk_add_f32 v[8:9], v[8:9], v[{G+24}:{G+25}]
    v_pk_add_f32 v[10:11], v[10:11], v[{G+26}:{G+27}]
    v_pk_add_f32 v[28:29], v[28:29], v[{G+28}:{G+29}]
    v_pk_add_f32 v[30:31], v[30:31], v[{G+30}:{G+31}]
''')
    wret()
    a('    s_cbranch_vccz L_hcalc')
    KF = 24
    a(f'''
L_retry1:
    s_add_u32 s62, s62, 1
    s_cmp_ge_u32 s62, 0x40000
    s_cbranch_scc1 L_exit
    s_cmp_lt_u32 s60, {KF}
    s_cbranch_scc1 L_r1a
    s_getreg_b32 s20, hwreg(HW_REG_XCC_ID)
    s_and_b32 s20, s20, 7
    s_lshl_b32 s20, s20, 7
    s_cmp_eq_u32 s60, {KF}
    s_cbranch_scc0 L_r1t
    v_or3_b32 v5, v{G}, v{G+1}, v{G+2}
    v_or_b32 v5, v5, v{G+3}
    v_and_b32 v5, v{VM1}, v5
    v_cmp_ne_u32 vcc, 0, v5
    s_cbranch_vccnz L_r1b
    v_or_b32 v8, v{T1}, v{G}
    v_or_b32 v9, v{T1+1}, v{G+1}
    v_or_b32 v10, v{T1+2}, v{G+2}
    v_xor_b32 v11, s20, v{T1+3}
    v_or_b32 v11, v11, v{G+3}
    v_xor_b32 v5, {P1_SAFE}, v{PA}
    global_store_dwordx4 v5, v[8:11], s[52:53] sc1
    s_waitcnt vmcnt(0)
L_r1t:
    v_xor_b32 v{T1+3}, s20, v{T1+3}
''')
    for i in range(8):
        a(f'    v_xor_b32 v{PA+i}, {P1_SAFE}, v{PA+i}')
    a('''
L_r1a:
    s_add_u32 s60, s60, 1
L_r1b:
''')
    for i in range(4):
        a(f'    global_load_dwordx4 v[{G+4*i}:{G+4*i+3}], v{PA+i}, s[52:53] sc1')
    a('''
    s_cmp_eq_u32 s18, 1
    s_cbranch_scc0 L_poll1
''')
    for i in range(4, 8):
        a(f'    global_load_dwordx4 v[{G+4*i}:{G+4*i+3}], v{PA+i}, s[52:53] sc1')
    a('    s_branch L_poll1s')
    a(f'''
L_aux:
    s_waitcnt lgkmcnt(0)
''')
    if not warm:
        a(f'    s_sleep {aux2}')
    a(f'''
    global_load_dwordx2 v[30:31], v{VZ}, s[50:51] sc1
''')
    stamp(2)
    if not w2late:
        a('    s_barrier')
    a(f'''
    s_waitcnt vmcnt(1)
    v_cmp_lt_i32 vcc, -1, v29
    s_cbranch_vccz L_aux2
    s_add_u32 s60, s60, 1
    s_waitcnt vmcnt(0)
    v_mov_b32 v28, v30
    v_mov_b32 v29, v31
L_aux1:
    s_waitcnt vmcnt(0)
    v_cmp_lt_i32 vcc, -1, v29
    s_cbranch_vccnz L_nretry
L_aux2:
''')
    tagcalc()
    if w2late:
        a('    s_barrier')
    a(f'''
    v_or_b32 v{T1}, 0x80000000, v{T1}
    ds_write_b128 v{VZ}, v[{T2}:{T2+3}] offset:{LDS_T+16}
    ds_write_b128 v{VZ}, v[{T1}:{T1+3}] offset:{LDS_T}
    s_waitcnt lgkmcnt(0)
''')
    stamp(3)
    if stamps:
        a('    s_barrier\n    s_barrier\n    s_branch L_end')
    a(f'''
    s_endpgm
L_nretry:
    global_load_dwordx2 v[28:29], v{VZ}, s[50:51] sc1
    s_add_u32 s60, s60, 1
    s_cmp_lt_u32 s60, 0x40000
    s_cbranch_scc1 L_aux1
    s_endpgm
''')
    if pad:
        a(f'.rept {pad//4}\n    s_nop 0\n.endr\n    s_endpgm')
    a('L_codeend:')
    a(RODATA)
    a(kdesc(KNAME, 256, 100))
    open(fname, 'w').write(a.text())
if __name__ == '__main__':
    B = dict(warm=False, nt='nt', stag=1, stagsl=8)
    V = dict(
      r0=dict(codepf=0),
      r1=dict(pffirst=True, codepf=0x18),
      r2=dict(pffirst=True, codepf=0x100),
    )
    for k, v in V.items():
        gen(f'v6_{k}.s', **B, **v)
        gen(f'v6_{k}b.s', **B, **v)
```

```python
import sys
from genlib import *
P1_SAFE = 4 << 20
P2_OFF = 2 << 20
WS_SIZE = 8 << 20
STAMP_OFF = 128 << 20
M1 = 0x3ff
M2 = 0xfff
L_W2 = 65536
L_X = 98304
L_H = 102400
L_T = 103424
LDS_SIZE = 103488

def orchain(a, dst, regs, first=True):
    regs = list(regs)
    i = 0
    if first:
        a(f'    v_or3_b32 v{dst}, v{regs[0]}, v{regs[1]}, v{regs[2]}')
        i = 3
    while i + 1 < len(regs):
        a(f'    v_or3_b32 v{dst}, v{dst}, v{regs[i]}, v{regs[i+1]}')
        i += 2
    if i < len(regs):
        a(f'    v_or_b32 v{dst}, v{dst}, v{regs[i]}')

def gen(fname, nt='nt', stamps=False, codepf=0x18, auxsleep=10, aux2=16, stag=1, stagsl=8, xsleep=14, KF=24, pt=None, gdelay=0, p1sc=False, xmap=False, gafter=False, gld='sc1', g1=4, h2first=True, ps1=None, ps2=None, early=None, outsc='', clean=0, sent=0, sj=0, otouch=None, gland=False, hotretry=True, rmap=False, RS=7168, n1=16):
    a = Asm()
    a(header([(KNAME, 256, 320, LDS_SIZE)]))
    a(kstart(KNAME))
    NST = 12
    def stamp(i):
        if stamps:
            a(f'    s_memrealtime s[{72+2*i}:{73+2*i}]')
    T1 = 12; T2 = 16; VM1 = 20; VM2 = 21; VG = 22; VRD = 23; VW2 = 24; VT = 25; VOUT = 26
    VA0 = 28; VA1 = 29; VX = 30; VHW = 31
    FB = 32
    G = 32
    AG = 60; AU = 64
    VB = 68
    VHR = 72; VP2 = 73
    F2 = 76
    A2 = 108
    if stamps:
        for i in range(1, NST):
            a(f'    s_mov_b64 s[{72+2*i}:{73+2*i}], 0')
    stamp(0)
    if codepf:
        a(f'''
    s_and_b32 s3, s2, {codepf}
    s_cbranch_scc1 L_nopf
    s_getpc_b64 s[20:21]
L_pc:
    v_lshlrev_b32 v5, 4, v0
    v_min_u32 v5, L_codeend-L_pc-4, v5
    global_load_dword v27, v5, s[20:21]
L_nopf:
''')
    a(f'''
    s_cmp_ge_u32 s2, 256
    s_cbranch_scc1 L_exit
    s_load_dwordx8 s[4:11], s[0:1], 0     ; x, w1, w3, w2
    s_load_dwordx4 s[48:51], s[0:1], 32
    s_load_dwordx2 s[52:53], s[0:1], 48   ; ws
    s_memrealtime s[36:37]
    v_lshrrev_b32 v1, 6, v0               ; wave
    v_and_b32 v2, 63, v0                  ; lane
    v_readfirstlane_b32 s54, v1
    v_lshrrev_b32 v3, 4, v2
    v_and_b32 v4, 7, v2                   ; b
    v_mov_b32 v{VT}, {L_T}
    s_mov_b32 s60, 0
''')
    if not xmap:
        a('''
    s_and_b32 s12, s2, 7
    s_lshr_b32 s13, s2, 3                 ; idx
    s_add_u32 s14, s12, 3
    s_and_b32 s14, s14, 7
    s_cmp_eq_u32 s14, 7
    s_cselect_b32 s14, 3, s14
    s_lshr_b32 s15, s13, 2                ; j (7 -> extra)
    s_and_b32 s17, s13, 3                 ; q
    s_cmp_eq_u32 s15, 7
    s_cselect_b32 s15, s14, s15
    s_cselect_b32 s19, 4, 0
    s_add_u32 s17, s17, s19
    s_mul_i32 s12, s12, 7
    s_add_u32 s16, s12, s15               ; fb
    s_cmp_eq_u32 s15, s14
    s_cselect_b32 s18, 1, 0
''')
    else:
        a('''
    s_lshr_b32 s16, s2, 2                 ; unit
    s_and_b32 s17, s2, 3                  ; q
    s_sub_u32 s12, s16, 56
    s_lshl_b32 s12, s12, 3
    s_add_u32 s12, s12, 3
    s_cmp_eq_u32 s16, 63
    s_cselect_b32 s12, 31, s12
    s_cmp_ge_u32 s16, 56
    s_cselect_b32 s16, s12, s16           ; fb
    s_cselect_b32 s19, 4, 0
    s_add_u32 s17, s17, s19
    s_and_b32 s12, s16, 7
    s_cmp_eq_u32 s12, 3
    s_cselect_b32 s18, 1, 0
    s_cmp_eq_u32 s16, 31
    s_cselect_b32 s18, 1, s18
''')
    a(f'''
    s_cmp_eq_u32 s54, 4
    s_cbranch_scc1 L_aux
    ; w13 source: row = r0 + 4w + (l>>4) ; piece = ((l&15)>>1) ^ ((l>>4) | (w>>1)<<2)
    s_sub_u32 s20, 8, s18
    s_lshl_b32 s21, s17, s20              ; r0
    v_lshl_add_u32 v5, v1, 2, v3
    v_add_u32 v5, s21, v5                 ; row
    v_mul_u32_u24 v6, 7168, v5
    v_bfe_u32 v7, v2, 1, 3                ; pos
    s_lshr_b32 s22, s54, 1
    s_lshl_b32 s22, s22, 2
    v_xor_b32 v7, v7, v3
    v_xor_b32 v7, s22, v7                 ; piece
    v_cmp_lt_u32 vcc, 3, v7               ; mat
    v_and_b32 v7, 3, v7
    v_and_b32 v8, 1, v2
    v_lshl_add_u32 v6, v7, 5, v6
    v_lshl_add_u32 v6, v8, 4, v6
    s_lshl_b32 s23, s16, 7                ; fb*128
    v_add_u32 v6, s23, v6
    ; x source: b*2048 + r0x*2 + (tid>>3)*16
    s_lshl_b32 s20, s18, 7
    s_sub_u32 s21, s21, s20               ; r0x
    s_lshl_b32 s21, s21, 1
    v_lshrrev_b32 v9, 3, v0
    v_lshlrev_b32 v9, 4, v9
    v_lshl_add_u32 v9, v4, 11, v9
    v_add_u32 v9, s21, v9
    s_mov_b64 s[42:43], {16*7168}
    s_lshl_b32 s38, s54, 10               ; w*1024
    s_add_u32 m0, s38, {L_X}
    s_mov_b32 s30, 16384
    s_mov_b32 s31, 0x20000
    s_lshl_b32 s39, s18, 15               ; split: tiles 4..7
    s_cmp_eq_u32 s18, 1
    s_cselect_b32 s20, 7, {n1-1}          ; loop count - 1
''' + (f'''
    s_lshl_b32 s40, s16, 15
    s_lshl_b32 s41, s17, 10
    s_add_u32 s40, s40, s41
    v_lshlrev_b32 v12, 4, v2
    v_lshl_add_u32 v12, v1, 13, v12
    v_add_u32 v12, s40, v12
''' if early is not None else '') + f'''
    s_or_b32 s21, s2, s54
    s_waitcnt lgkmcnt(0)
    s_cbranch_scc1 L_nonw
    s_or_b32 s37, s37, 0x80000000
    v_mov_b32 v10, s36
    v_mov_b32 v11, s37
    v_mov_b32 v8, 0
    s_mov_b64 exec, 1
    global_store_dwordx2 v8, v[10:11], s[50:51] sc1
    s_mov_b64 exec, -1
L_nonw:
''' + (f'    global_load_dwordx4 v[{A2}:{A2+3}], v12, s[52:53] {early}\n' if early is not None else '') + f'''
    s_mov_b32 s28, s4
    s_mov_b32 s29, s5
    v_mov_b32 v10, s6
    v_mov_b32 v11, s7
    v_mov_b32 v7, s8
    v_mov_b32 v8, s9
    buffer_load_dwordx4 v9, s[28:31], 0 offen lds
    v_cndmask_b32 v10, v10, v7, vcc
    v_cndmask_b32 v11, v11, v8, vcc
    v_add_co_u32 v126, vcc, v10, v6
    s_add_u32 m0, s38, s39
    s_nop 0
    v_addc_co_u32 v127, vcc, 0, v11, vcc
L_i13:
    global_load_lds_dwordx4 v[126:127], off {nt}
    v_lshl_add_u64 v[126:127], v[126:127], 0, s[42:43]
    s_addk_i32 m0, 0x1000
    s_sub_u32 s20, s20, 1
    s_cbranch_scc0 L_i13
''')
    stamp(1)
    a(f'''
    v_lshrrev_b32 v5, 5, v2
    v_lshl_add_u32 v5, v1, 1, v5          ; 2w + (l>>5)
    v_bfe_u32 v7, v2, 1, 4
    v_xor_b32 v7, v7, v5
    v_and_b32 v8, 1, v2
    v_lshlrev_b32 v{VW2}, 11, v5
    v_lshl_add_u32 v{VW2}, v7, 5, v{VW2}
    v_lshl_add_u32 v{VW2}, v8, 4, v{VW2}
    s_lshl_b32 s22, s16, 17               ; fb*64*2048
    s_lshl_b32 s21, s17, 9                ; q*512
    s_add_u32 s22, s22, s21
    s_mov_b32 s24, s10
    s_mov_b32 s25, s11
    s_cmp_lg_u32 s19, 0
    s_cselect_b32 s26, 0, 7340032
    s_mov_b32 s27, 0x20000
    s_mov_b32 s32, s52
    s_mov_b32 s33, s53
    s_mov_b32 s34, {WS_SIZE}
    s_mov_b32 s35, 0x20000
    s_mov_b32 s56, 0xff00ff00
    s_mov_b32 s57, 0xff00ff00
    v_mov_b32 v{VM1}, {M1}
    v_mov_b32 v{VM2}, {M2}
    v_bfe_u32 v5, v2, 2, 2                ; r
    v_and_b32 v6, 3, v2                   ; cq
    v_and_b32 v7, 1, v3
    v_lshl_add_u32 v7, v7, 2, v5          ; f
    v_lshl_add_u32 v8, v3, 3, v5          ; 8slab + r
    v_lshlrev_b32 v8, 8, v8
    v_lshl_add_u32 v8, v6, 3, v8
    v_add_u32 v8, s39, v8
    v_xor_b32 v9, v1, v7
    v_lshl_add_u32 v{VA0}, v9, 5, v8
    v_xor_b32 v{VA1}, 0x80, v{VA0}
    v_lshlrev_b32 v10, 4, v4              ; b*16
    v_lshl_add_u32 v{VX}, v3, 7, v10
    s_lshr_b32 s20, s39, 4
    s_add_u32 s20, s20, {L_X}
    v_add_u32 v{VX}, s20, v{VX}
    v_lshrrev_b32 v8, 1, v3
    v_lshl_add_u32 v8, v8, 4, v7
    v_lshlrev_b32 v8, 9, v8
    v_lshl_add_u32 v8, v6, 3, v8
    v_add_u32 v8, {L_W2}, v8
    v_lshlrev_b32 v9, 2, v1
    v_xor_b32 v9, v9, v7
    v_lshl_add_u32 v{VB}, v9, 5, v8
    v_xor_b32 v{VB+1}, 32, v{VB}
    v_xor_b32 v{VB+2}, 64, v{VB}
    v_xor_b32 v{VB+3}, 0x60, v{VB}
    s_lshl_b32 s20, s16, 15
    v_lshlrev_b32 v11, 4, v2              ; l*16
    v_lshl_add_u32 v{VG}, v1, 13, v11
    v_add_u32 v{VG}, s20, v{VG}
    s_lshl_b32 s71, s17, 10
    s_lshl_b32 s20, s18, 12
    s_add_u32 s20, s20, 0xfff
''')
    for i in range(7):
        a(f'    s_add_u32 s{64+i}, s{71 if i == 0 else 63+i}, 1024\n    s_and_b32 s{64+i}, s{64+i}, s20')
    a(f'''
    ; h write addr: L_H + b*128 + ((w>>1)*32 + ((w&1)*2 + (mh&1))*8 + (mh>>1)*4 + 2*bit3)*2
    v_lshlrev_b32 v8, 7, v4
    v_add_u32 v8, {L_H}, v8
    v_lshl_add_u32 v{VHR}, v3, 4, v8      ; h read addr (+64 for kstep 1)
    v_lshl_add_u32 v8, v1, 5, v8          ; w*32 bytes = (w>>1)*64 + (w&1)*32
    v_and_b32 v9, 1, v3
    v_lshl_add_u32 v8, v9, 4, v8
    v_lshrrev_b32 v9, 1, v3
    v_lshl_add_u32 v8, v9, 3, v8
    v_bfe_u32 v9, v2, 3, 1                ; bit3
    v_lshl_add_u32 v{VHW}, v9, 2, v8
    ; P2 store addr: rho = (4q+w)*16 + (c + 2*bit3)*4 + mh ; P2_OFF + rho*7168 + fb*128 + b*16
    v_lshl_add_u32 v8, v1, 4, v3
    v_lshl_add_u32 v8, v9, 3, v8
    s_lshl_b32 s20, s17, 6
    v_add_u32 v8, s20, v8
    v_mul_u32_u24 v8, {RS}, v8
    s_and_b32 s45, s2, 7
    s_lshl_b32 s20, s15, 3
    s_add_u32 s20, s20, s45
    s_lshl_b32 s20, s20, 7
    s_add_u32 s20, s20, {P2_OFF}
''' + ('''
    s_lshl_b32 s45, s45, 3
    s_lshl_b64 s[46:47], 0xff, s45        ; lanes of own (assumed) xcd in a reducer load
''' if sent else '') + f'''
    v_add3_u32 v{VP2}, v8, v10, s20
    v_add_u32 v{VP2+1}, {4*RS}, v{VP2}
    ; reducer: read addr, out addr (col = 4*rho + r, r = l>>4)
''' + ('''
    s_and_b32 s13, s2, 7
    s_lshl_b32 s13, s13, 5
    s_lshr_b32 s12, s2, 3
    s_add_u32 s13, s13, s12               ; rho: one xcd owns whole output lines
''' if rmap else '    s_mov_b32 s13, s2\n') + f'''
    s_mul_i32 s12, s13, {RS}
    s_add_u32 s12, s12, {P2_OFF + 3072}
    v_add_u32 v{VRD}, s12, v11
    s_lshl_b32 s12, s13, 2
    v_add_u32 v{VOUT}, s12, v3
    v_lshl_add_u32 v{VOUT}, v4, 10, v{VOUT}
    v_lshlrev_b32 v{VOUT}, 1, v{VOUT}
''')
    for i in range(8):
        a(f'    v_mov_b32 v{AG+i}, 0')
    if n1 < 16:
        a(f'''
    s_cmp_eq_u32 s18, 1
    s_cbranch_scc1 L_i13d
    s_mov_b32 s20, {15-n1}
L_i13b:
    global_load_lds_dwordx4 v[126:127], off {nt}
    v_lshl_add_u64 v[126:127], v[126:127], 0, s[42:43]
    s_addk_i32 m0, 0x1000
    s_sub_u32 s20, s20, 1
    s_cbranch_scc0 L_i13b
L_i13d:
''')
    npt = 0
    if ps1 is not None:
        a(f'    buffer_store_dwordx4 v[{AG}:{AG+3}], v{VG}, s[32:35], s71 offen {ps1}')
        npt += 1
    if ps2 is not None:
        a(f'    global_store_dwordx4 v{VP2}, v[{AG}:{AG+3}], s[52:53] {ps2}')
        a(f'    global_store_dwordx4 v{VP2+1}, v[{AG}:{AG+3}], s[52:53] {ps2}')
        npt += 2
    if pt is not None:
        a(f'    buffer_load_dwordx4 v[{A2}:{A2+3}], v{VG}, s[32:35], s71 offen {pt}')
        npt += 1
    a(f'''
    s_mov_b32 s21, 0
    s_lshl_b32 s44, s18, 1
L_pl:
    s_cmp_lt_u32 s21, s44
    s_cbranch_scc1 L_iss
    s_waitcnt vmcnt({12+npt})
''')
    if g1 < 4:
        a(f'''
    s_cmp_lt_u32 s21, 2
    s_cbranch_scc1 L_pl2
    s_waitcnt vmcnt({8+g1+npt})
L_pl2:
''')
    a('    s_barrier')
    def trreads(dst, off):
        a(f'''
    ds_read_b64_tr_b16 v[{dst}:{dst+1}], v{VA0} offset:{off}
    ds_read_b64_tr_b16 v[{dst+2}:{dst+3}], v{VA0} offset:{off+1024}
    ds_read_b64_tr_b16 v[{dst+4}:{dst+5}], v{VA1} offset:{off}
    ds_read_b64_tr_b16 v[{dst+6}:{dst+7}], v{VA1} offset:{off+1024}
''')
    def mf(acc, f, x):
        a(f'    v_mfma_f32_16x16x32_bf16 v[{acc}:{acc+3}], v[{f}:{f+3}], v[{x}:{x+3}], v[{acc}:{acc+3}]')
    X0 = FB + 16; X1 = FB + 20
    a(f'    ds_read_b128 v[{X0}:{X0+3}], v{VX}')
    trreads(FB, 0)
    a(f'    ds_read_b128 v[{X1}:{X1+3}], v{VX} offset:512')
    trreads(FB+8, 8192)
    a(f'''
    v_add_u32 v{VA0}, 16384, v{VA0}
    v_add_u32 v{VA1}, 16384, v{VA1}
    v_add_u32 v{VX}, 1024, v{VX}
    s_cmp_eq_u32 s21, 2
    s_waitcnt lgkmcnt(5)
''')
    mf(AG, FB, X0); mf(AU, FB+4, X0)
    a('    s_waitcnt lgkmcnt(0)')
    mf(AG, FB+8, X1); mf(AU, FB+12, X1)
    a(f'''
    s_cbranch_scc1 L_pdone
L_iss:
''' + ('    s_mov_b32 s20, 3\n' if g1 == 4 else f'    s_cmp_eq_u32 s21, 0\n    s_cselect_b32 s20, 3, {g1-1}\n') + f'''
    s_add_u32 s21, s21, 1
''' + ('    s_cmp_lt_i32 s20, 0\n    s_cbranch_scc1 L_pl\n' if g1 == 0 else '') + f'''
L_i2:
    buffer_load_dwordx4 v{VW2}, s[24:27], s22 offen {nt} lds
    s_add_u32 s22, s22, 16384
    s_addk_i32 m0, 0x1000
    s_sub_u32 s20, s20, 1
    s_cbranch_scc0 L_i2
    s_branch L_pl
L_pdone:
''')
    stamp(9)
    a(f'''
    ds_read_b128 v[{T1}:{T1+3}], v{VT}
    ds_read_b128 v[{T2}:{T2+3}], v{VT} offset:16
    ds_read_b128 v[{X0}:{X0+3}], v{VX}
    ds_read_b128 v[{X1}:{X1+3}], v{VX} offset:512
    s_waitcnt vmcnt({6+g1+npt})
    s_barrier
''')
    trreads(FB, 0)
    a('    s_waitcnt lgkmcnt(0)')
    mf(AG, FB, X0); mf(AU, FB+4, X0)
    a(f'''
    s_waitcnt vmcnt({4+g1})
    s_barrier
''')
    stamp(2)
    trreads(FB+8, 8192)
    a('    s_waitcnt lgkmcnt(2)')
    mf(AG, FB+8, X1)
    a('    s_waitcnt lgkmcnt(0)')
    mf(AU, FB+12, X1)
    a('    s_cmp_eq_u32 s18, 1\n    s_nop 6')
    for r in range(4):
        a(f'    v_cndmask_b32 v{8+r}, v{AG+r}, v{AU+r}, s[56:57]')
    for r in range(4):
        a(f'    v_bfi_b32 v{124+r}, v{VM1}, v{T1+r}, v{8+r}')
    a(f'    buffer_store_dwordx4 v[124:127], v{VG}, s[32:35], s71 offen {"sc1" if p1sc else ""}')
    if clean:
        a(f'    v_mov_b32 v27, v{VG}')
    stamp(3)
    def gather(lo, hi, fl=None):
        for i in range(lo, hi):
            a(f'    buffer_load_dwordx4 v[{G+4*i}:{G+4*i+3}], v{VG}, s[32:35], s{64+i} offen {fl or gld}')
    def h2():
        for _ in range(4 - g1):
            a(f'''
    buffer_load_dwordx4 v{VW2}, s[24:27], s22 offen {nt} lds
    s_add_u32 s22, s22, 16384
    s_addk_i32 m0, 0x1000
    s_cmp_eq_u32 s18, 1
''')
    h2()
    if gafter:
        a('    s_waitcnt vmcnt(1)')
    if gdelay:
        a(f'    s_sleep {gdelay}')
    for k in range(stag + 1):
        if k and gland and k == stag:
            a(f'    s_cbranch_scc0 L_gw\n    s_waitcnt vmcnt({7*k})\n    s_branch L_gw2\nL_gw:\n    s_waitcnt vmcnt({3*k})\nL_gw2:')
        elif k:
            a(f'    s_sleep {stagsl}')
        a(f'    s_cbranch_scc0 L_g{k}')
        gather(3, 7)
        a(f'L_g{k}:')
        gather(0, 3)
    if not gland:
        a(f'    s_waitcnt vmcnt({3*(stag+1)+(1 if g1 == 4 else 0)})')
    a('    s_barrier')
    stamp(4)
    for s in range(2):
        for c in range(4):
            for hh in range(2):
                d = F2 + 16*s + 4*c + 2*hh
                a(f'    ds_read_b64_tr_b16 v[{d}:{d+1}], v{VB+c} offset:{16384*s + 4096*hh}')
    a('L_poll1:')
    a('    s_waitcnt vmcnt(0)')
    for i in range(3):
        for k in range(4):
            a(f'    v_xor_b32 v{G+4*i+k}, v{T1+k}, v{G+4*i+k}')
    orchain(a, 5, range(G, G+12))
    a(f'''
    v_pk_add_f32 v[{AG}:{AG+1}], v[8:9], v[{G}:{G+1}]
    v_pk_add_f32 v[{AG+2}:{AG+3}], v[10:11], v[{G+2}:{G+3}]
    v_pk_add_f32 v[{AU}:{AU+1}], v[{G+4}:{G+5}], v[{G+8}:{G+9}]
    v_pk_add_f32 v[{AU+2}:{AU+3}], v[{G+6}:{G+7}], v[{G+10}:{G+11}]
    s_cbranch_scc1 L_more
L_hcalc:
    v_and_b32 v5, v{VM1}, v5
    v_pk_add_f32 v[{AG}:{AG+1}], v[{AG}:{AG+1}], v[{AU}:{AU+1}]
    v_pk_add_f32 v[{AG+2}:{AG+3}], v[{AG+2}:{AG+3}], v[{AU+2}:{AU+3}]
    v_cmp_ne_u32 vcc, 0, v5
    v_cvt_pk_bf16_f32 v6, v{AG}, v{AG+1}
    v_cvt_pk_bf16_f32 v7, v{AG+2}, v{AG+3}
    v_cvt_pk_bf16_f32 v5, v{AG+2}, v{AG+3}
    s_cbranch_vccnz L_retry1
''')
    stamp(10 - 0) if False else None
    a(f'''
    v_mov_b32_dpp v7, v6 row_ror:8 row_mask:0xf bank_mask:0x3
    v_mov_b32_dpp v6, v5 row_ror:8 row_mask:0xf bank_mask:0xc
    v_lshlrev_b32 v{AU}, 16, v7
    v_and_b32 v{AU+1}, 0xffff0000, v7
    v_lshlrev_b32 v{AG}, 16, v6
    v_and_b32 v{AG+1}, 0xffff0000, v6
    v_mul_f32 v{AG+2}, 0xbfb8aa3b, v{AG}
    v_mul_f32 v{AG+3}, 0xbfb8aa3b, v{AG+1}
    v_exp_f32 v{AG+2}, v{AG+2}
    v_exp_f32 v{AG+3}, v{AG+3}
    s_nop 0
    v_add_f32 v{AG+2}, 1.0, v{AG+2}
    v_add_f32 v{AG+3}, 1.0, v{AG+3}
    v_rcp_f32 v{AG+2}, v{AG+2}
    v_rcp_f32 v{AG+3}, v{AG+3}
    s_nop 0
    v_mul_f32 v{AG+2}, v{AG}, v{AG+2}
    v_mul_f32 v{AG+3}, v{AG+1}, v{AG+3}
    v_cvt_pk_bf16_f32 v6, v{AG+2}, v{AG+3}
    v_lshlrev_b32 v{AG}, 16, v6
    v_and_b32 v{AG+1}, 0xffff0000, v6
    v_mul_f32 v{AG}, v{AG}, v{AU}
    v_mul_f32 v{AG+1}, v{AG+1}, v{AU+1}
    v_cvt_pk_bf16_f32 v6, v{AG}, v{AG+1}
    ds_write_b32 v{VHW}, v6
    s_cmp_lg_u32 s19, 0
    s_waitcnt lgkmcnt(0)
    s_barrier
''')
    stamp(5)
    a(f'''
    ds_read_b128 v[{AG}:{AG+3}], v{VHR}
    ds_read_b128 v[{AU}:{AU+3}], v{VHR} offset:64
    s_cbranch_scc1 L_extra
    s_waitcnt lgkmcnt(1)
''')
    for s in range(2):
        if s == 1:
            a('    s_waitcnt lgkmcnt(0)')
        hb = AG if s == 0 else AU
        for c in (0, 2, 1, 3):
            cin = '0' if s == 0 else f'v[{A2+4*c}:{A2+4*c+3}]'
            f = F2 + s*16 + 4*c
            a(f'    v_mfma_f32_16x16x32_bf16 v[{A2+4*c}:{A2+4*c+3}], v[{f}:{f+3}], v[{hb}:{hb+3}], {cin}')
    a('    s_cmp_lg_u32 s54, 0\n    s_nop 4')
    for c in range(2):
        for r in range(4):
            a(f'    v_cndmask_b32 v{A2+4*c+r}, v{A2+4*c+r}, v{A2+8+4*c+r}, s[56:57]')
        for r in range(4):
            a(f'    v_bfi_b32 v{A2+4*c+r}, v{VM2}, v{T2+r}, v{A2+4*c+r}')
        a(f'    global_store_dwordx4 v{VP2+c}, v[{A2+4*c}:{A2+4*c+3}], s[52:53] sc1')
    stamp(6)
    CL = '    buffer_store_dwordx4 v[124:127], v27, s[32:35], s71 offen sc1'
    if clean == 1:
        a(CL)
    SL = f'    global_load_dwordx4 v[{G}:{G+3}], v{VRD}, s[52:53] offset:{1024*sj-3072} sc1'
    if sent == 1:
        a('    s_cbranch_scc1 L_wend')
        a(SL)
    a('    s_waitcnt vmcnt(0)')
    if sent != 1:
        a('    s_cbranch_scc1 L_end')
    a('    s_barrier')
    if sent == 2:
        a('L_sent0:')
        a(SL)
        a('    s_waitcnt vmcnt(0)')
    if sent:
        a(f'''
L_sent:
    v_xor_b32 v{G}, v{T2}, v{G}
    v_xor_b32 v{G+1}, v{T2+1}, v{G+1}
    v_and_or_b32 v5, v{G}, v{VM2}, 0
    v_and_or_b32 v5, v{G+1}, v{VM2}, v5
    v_cmp_ne_u32 vcc, 0, v5
    s_andn2_b64 vcc, vcc, s[46:47]
    s_cbranch_scc1 L_sretry
''')
    a('L_poll2:')
    for i in range(7):
        a(f'    global_load_dwordx4 v[{G+4*i}:{G+4*i+3}], v{VRD}, s[52:53] offset:{1024*i-3072} sc1')
    for i in range(7):
        a(f'    s_waitcnt vmcnt({6-i})')
        for k in range(4):
            a(f'    v_xor_b32 v{G+4*i+k}, v{T2+k}, v{G+4*i+k}')
        if i == 0:
            a(f'    v_or3_b32 v5, v{G}, v{G+1}, v{G+2}')
            a(f'    v_or_b32 v5, v5, v{G+3}')
        else:
            a(f'    v_or3_b32 v5, v5, v{G+4*i}, v{G+4*i+1}')
            a(f'    v_or3_b32 v5, v5, v{G+4*i+2}, v{G+4*i+3}')
            src = 8 if i > 1 else G
            a(f'    v_pk_add_f32 v[8:9], v[{src}:{src+1}], v[{G+4*i}:{G+4*i+1}]')
            a(f'    v_pk_add_f32 v[10:11], v[{src+2}:{src+3}], v[{G+4*i+2}:{G+4*i+3}]')
    a(f'''
    v_and_b32 v5, v{VM2}, v5
    v_cmp_ne_u32 vcc, 0, v5
    v_permlane32_swap_b32 v8, v10
    v_permlane32_swap_b32 v9, v11
    s_cbranch_vccnz L_retry2
''')
    stamp(7)
    a(f'''
    v_add_f32 v8, v8, v10
    v_add_f32 v9, v9, v11
    s_nop 1
    v_permlane16_swap_b32 v8, v9
    s_nop 0
    v_add_f32 v8, v8, v9
    s_nop 1
    v_add_f32_dpp v8, v8, v8 row_ror:8 row_mask:0xf bank_mask:0xf
    s_mov_b64 exec, s[56:57]
    v_cvt_pk_bf16_f32 v8, v8, v8
    global_store_short v{VOUT}, v8, s[48:49] {outsc}
''')
    if stamps:
        a('    s_waitcnt vmcnt(0)')
        stamp(8)
        a('    s_branch L_dump')
    a('L_end:')
    if stamps:
        stamp(7)
        a('''
    s_barrier
L_dump0:
    s_sleep 60
L_dump:
    s_mov_b64 exec, -1
    s_waitcnt lgkmcnt(0)
    s_add_u32 s92, s60, s72
    s_addc_u32 s93, 0, s73
    s_mov_b64 s[94:95], s[72:73]
''')
        for i in range(2*NST):
            a(f'    v_mov_b32 v{64+i}, s{72+i}')
        a(f'''
    s_lshl_b32 s12, s54, 8
    s_add_u32 s12, s12, s2
    s_mul_i32 s12, s12, {NST*8}
    s_add_u32 s12, s12, {STAMP_OFF}
    v_mov_b32 v5, s12
    s_mov_b64 exec, 1
''')
        for i in range(NST//2):
            a(f'    global_store_dwordx4 v5, v[{64+4*i}:{67+4*i}], s[52:53] offset:{16*i}')
    a(f'''
L_exit:
    s_endpgm
L_extra:
''' + (f'    s_sleep 6\n{CL}\n' if clean else '') + f'''
    s_cmp_lg_u32 s54, 0
    s_cbranch_scc1 {'L_dump0' if stamps else 'L_exit'}
    s_sleep {xsleep}
    s_branch {'L_sretry' if sent else 'L_poll2'}
''' + (f'''
L_wend:
    s_waitcnt vmcnt(0)
    s_branch L_end
L_sretry:
{SL}
    s_add_u32 s60, s60, 1
    s_cmp_lt_u32 s60, 0x40000
    s_waitcnt vmcnt(0)
    s_cbranch_scc1 L_sent
    s_endpgm
''' if sent else '') + f'''
L_retry2:
    s_add_u32 s60, s60, 1
    s_cmp_lt_u32 s60, 0x40000
    s_cbranch_scc1 L_poll2
    s_endpgm
L_more:
''')
    for i in range(3, 7):
        for k in range(4):
            a(f'    v_xor_b32 v{G+4*i+k}, v{T1+k}, v{G+4*i+k}')
    orchain(a, 5, range(G+12, G+28), first=False)
    for i in range(3, 7):
        acc = AG if i & 1 else AU
        a(f'    v_pk_add_f32 v[{acc}:{acc+1}], v[{acc}:{acc+1}], v[{G+4*i}:{G+4*i+1}]')
        a(f'    v_pk_add_f32 v[{acc+2}:{acc+3}], v[{acc+2}:{acc+3}], v[{G+4*i+2}:{G+4*i+3}]')
    a('    s_branch L_hcalc')
    a(f'''
L_aux:
    s_setprio 3
    v_mov_b32 v8, 0
    s_getreg_b32 s20, hwreg(HW_REG_XCC_ID)
    s_waitcnt lgkmcnt(0)
''' + (f'''
    s_and_b32 s21, s2, 127
    s_lshl_b32 s21, s21, 7
    v_mov_b32 v9, s21
    global_load_dword v10, v9, s[48:49] {otouch}
''' if otouch is not None else '') + f'''
    s_sleep {auxsleep}
    global_load_dwordx2 v[28:29], v8, s[50:51] sc1
    s_sleep {aux2}
    global_load_dwordx2 v[30:31], v8, s[50:51] sc1
    s_and_b32 s20, s20, {0 if p1sc else 7}
    s_lshl_b32 s20, s20, 7
    s_cmp_eq_u32 s18, 1
    s_cbranch_scc1 L_aux0
    s_barrier
    s_barrier
L_aux0:
    s_waitcnt vmcnt(1)
    v_cmp_lt_i32 vcc, -1, v29
    s_cbranch_vccz L_aux2
L_aux1:
    s_waitcnt vmcnt(0)
    v_mov_b32 v28, v30
    v_mov_b32 v29, v31
    v_cmp_lt_i32 vcc, -1, v31             ; nonce not yet valid
    s_cbranch_vccnz L_nretry
L_aux2:
    v_and_b32 v{T1}, {M1}, v28
    v_bfe_u32 v{T1+1}, v28, 10, 10
    v_bfe_u32 v{T1+2}, v28, 20, 10
    v_alignbit_b32 v5, v29, v28, 30
    v_and_b32 v5, {M1}, v5
    v_xor_b32 v{T1+3}, s20, v5
    v_and_b32 v{T2}, {M2}, v28
    v_bfe_u32 v{T2+1}, v28, 12, 12
    v_alignbit_b32 v5, v29, v28, 24
    v_and_b32 v{T2+2}, {M2}, v5
    v_bfe_u32 v{T2+3}, v29, 4, 12
    ds_write_b128 v{VT}, v[{T1}:{T1+3}]
    ds_write_b128 v{VT}, v[{T2}:{T2+3}] offset:16
    s_waitcnt lgkmcnt(0)
''')
    stamp(3)
    if stamps:
        a('    s_barrier\n    s_barrier\n    s_barrier\n    s_barrier\n    s_barrier\n    s_and_b32 s20, s2, 0xe0\n    s_cmp_eq_u32 s20, 0xe0\n    s_cbranch_scc1 L_dump0\n    s_branch L_end')
    a(f'''
    s_endpgm
''' + ('' if hotretry else 'L_codeend:\n') + f'''
L_nretry:
    global_load_dwordx2 v[30:31], v8, s[50:51] sc1
    s_add_u32 s60, s60, 1
    s_cmp_lt_u32 s60, 0x40000
    s_cbranch_scc1 L_aux1
    s_endpgm
L_retry1:
    s_cmp_lt_u32 s60, {0x7fffffff if p1sc else KF}
    s_cbranch_scc1 L_r1a
    s_getreg_b32 s20, hwreg(HW_REG_XCC_ID)
    s_and_b32 s20, s20, 7
    s_lshl_b32 s20, s20, 7
    v_xor_b32 v{T1+3}, s20, v{T1+3}       ; toggle tag between plain (xcc-mixed) and safe form
    v_xor_b32 v{VG}, {P1_SAFE}, v{VG}
    s_cmp_eq_u32 s60, {KF}
    s_cbranch_scc0 L_r1a
''')
    for r in range(4):
        a(f'    v_bfi_b32 v{AG+r}, v{VM1}, v{T1+r}, v{8+r}')
    a(f'''
    buffer_store_dwordx4 v[{AG}:{AG+3}], v{VG}, s[32:35], s71 offen sc1
    s_waitcnt vmcnt(0)
L_r1a:
    s_add_u32 s60, s60, 1
    s_cmp_ge_u32 s60, 0x40000
    s_cbranch_scc1 L_exit
    s_cmp_eq_u32 s18, 1
    s_cbranch_scc0 L_r1b
''')
    gather(3, 7, 'sc1')
    a('L_r1b:')
    gather(0, 3, 'sc1')
    a('    s_branch L_poll1')
    if hotretry:
        a('L_codeend:')
    a(RODATA)
    a(kdesc(KNAME, 128, 100))
    open(fname, 'w').write(a.text())
if __name__ == '__main__':
    B = dict(gland=True, KF=10, rmap=True)
    V = dict(
      r=dict(),
    )
    for k, v in V.items():
        gen(f'v7_{k}.s', **B, **v)
        gen(f'v7_{k}_st.s', stamps=True, **B, **v)
    HDR = '''; SwiGLU decode (B=8, D=1024, F=3584), one fused launch.  out = (silu(x@w1) * (x@w3)) @ w2
'''
    t = open('v7_r.s').read().replace('; generated\n', HDR)
    import re
    t = re.sub(r'\n\n+', '\n', t)
    open('final.s', 'w').write(t)
```

```python
import sys
from genlib import *
P1_SAFE = 4 << 20
P2_OFF = 2 << 20
WS_SIZE = 8 << 20
STAMP_OFF = 128 << 20
M1 = 0x3ff
M2 = 0xfff
L_W2 = 65536
L_X = 98304
L_H = 102400
L_T = 103424
LDS_SIZE = 103488

def orchain(a, dst, regs, first=True):
    regs = list(regs)
    i = 0
    if first:
        a(f'    v_or3_b32 v{dst}, v{regs[0]}, v{regs[1]}, v{regs[2]}')
        i = 3
    while i + 1 < len(regs):
        a(f'    v_or3_b32 v{dst}, v{dst}, v{regs[i]}, v{regs[i+1]}')
        i += 2
    if i < len(regs):
        a(f'    v_or_b32 v{dst}, v{dst}, v{regs[i]}')

def gen(fname, nt='nt', stamps=False, codepf=0x18, auxsleep=10, aux2=16, stag=1, stagsl=8, xsleep=14, KF=24, pt=None, gdelay=0, p1sc=False, xmap=False, gafter=False, gld='sc1', g1=4, h2first=True, ps1=None, ps2=None, early=None, outsc='', clean=0, sent=0, sj=0, otouch=None, gland=False, hotretry=True, rmap=False, RS=7168, n1=16, bal=False, xpt=None, xptpos=0, helpers=False, hp2=None):
    a = Asm()
    a(header([(KNAME, 256, 320, LDS_SIZE)]))
    a(kstart(KNAME))
    NST = 12
    def stamp(i):
        if stamps:
            a(f'    s_memrealtime s[{72+2*i}:{73+2*i}]')
    T1 = 12; T2 = 16; VM1 = 20; VM2 = 21; VG = 22; VRD = 23; VW2 = 24; VT = 25; VOUT = 26
    VA0 = 28; VA1 = 29; VX = 30; VHW = 31
    FB = 32
    G = 32
    AG = 60; AU = 64
    VB = 68
    VHR = 72; VP2 = 73
    F2 = 76
    A2 = 108
    if stamps:
        for i in range(1, NST):
            a(f'    s_mov_b64 s[{72+2*i}:{73+2*i}], 0')
    stamp(0)
    if codepf:
        a(f'''
    s_and_b32 s3, s2, {codepf}
    s_cbranch_scc1 L_nopf
    s_getpc_b64 s[20:21]
L_pc:
    v_lshlrev_b32 v5, 4, v0
    v_min_u32 v5, L_codeend-L_pc-4, v5
    global_load_dword v27, v5, s[20:21]
L_nopf:
''')
    a(f'''
    s_cmp_ge_u32 s2, 256
    s_cbranch_scc1 L_exit
    s_load_dwordx8 s[4:11], s[0:1], 0     ; x, w1, w3, w2
    s_load_dwordx4 s[48:51], s[0:1], 32
    s_load_dwordx2 s[52:53], s[0:1], 48   ; ws
    s_memrealtime s[36:37]
    v_lshrrev_b32 v1, 6, v0               ; wave
    v_and_b32 v2, 63, v0                  ; lane
    v_readfirstlane_b32 s54, v1
    v_lshrrev_b32 v3, 4, v2
    v_and_b32 v4, 7, v2                   ; b
    v_mov_b32 v{VT}, {L_T}
    s_mov_b32 s60, 0
''')
    if bal:
        a('''
    s_and_b32 s12, s2, 7
    s_lshr_b32 s13, s2, 3                 ; idx
    s_lshr_b32 s15, s13, 2
    s_lshl_b32 s14, s12, 3                ; 8x
    s_lshl_b32 s16, s12, 2
    s_add_u32 s16, s16, 16                ; 32 + 4(x-4)
    s_cmp_lt_u32 s12, 4
    s_cselect_b32 s14, s14, s16
    s_add_u32 s14, s14, s15
    s_mul_i32 s15, s14, 37
    s_lshr_b32 s15, s15, 8                ; n/7
    s_add_u32 s16, s14, s15               ; 8(n/7) + n%7
    s_and_b32 s17, s16, 7
    s_cmp_ge_u32 s17, 3
    s_addc_u32 s16, s16, 0
    s_lshl_b32 s14, s12, 4
    s_and_b32 s15, s13, 8
    s_add_u32 s14, s14, s15
    s_sub_u32 s14, s14, 61                ; 8s+3, s = 2(x-4) + ((idx>>3)&1)
    s_min_u32 s14, s14, 55
    s_and_b32 s15, s2, 0x84
    s_cmp_eq_u32 s15, 0x84
    s_cselect_b32 s16, s14, s16
    s_cselect_b32 s18, 1, 0
    s_cselect_b32 s17, 7, 3
    s_and_b32 s17, s17, s13               ; q
    s_and_b32 s19, s17, 4
''')
    elif not xmap:
        a('''
    s_and_b32 s12, s2, 7
    s_lshr_b32 s13, s2, 3                 ; idx
    s_add_u32 s14, s12, 3
    s_and_b32 s14, s14, 7
    s_cmp_eq_u32 s14, 7
    s_cselect_b32 s14, 3, s14
    s_lshr_b32 s15, s13, 2                ; j (7 -> extra)
    s_and_b32 s17, s13, 3                 ; q
    s_cmp_eq_u32 s15, 7
    s_cselect_b32 s15, s14, s15
    s_cselect_b32 s19, 4, 0
    s_add_u32 s17, s17, s19
    s_mul_i32 s12, s12, 7
    s_add_u32 s16, s12, s15               ; fb
    s_cmp_eq_u32 s15, s14
    s_cselect_b32 s18, 1, 0
''')
    else:
        a('''
    s_lshr_b32 s16, s2, 2                 ; unit
    s_and_b32 s17, s2, 3                  ; q
    s_sub_u32 s12, s16, 56
    s_lshl_b32 s12, s12, 3
    s_add_u32 s12, s12, 3
    s_cmp_eq_u32 s16, 63
    s_cselect_b32 s12, 31, s12
    s_cmp_ge_u32 s16, 56
    s_cselect_b32 s16, s12, s16           ; fb
    s_cselect_b32 s19, 4, 0
    s_add_u32 s17, s17, s19
    s_and_b32 s12, s16, 7
    s_cmp_eq_u32 s12, 3
    s_cselect_b32 s18, 1, 0
    s_cmp_eq_u32 s16, 31
    s_cselect_b32 s18, 1, s18
''')
    a(f'''
''' + ('''
    s_mov_b32 s18, 0
    s_cmp_lg_u32 s19, 0
    s_cselect_b32 s16, s12, s16
    s_cselect_b32 s18, 1, 0
''' if helpers else '') + f'''
    s_cmp_eq_u32 s54, 4
    s_cbranch_scc1 L_aux
''' + ('    s_mov_b32 s18, 0\n' if helpers else '') + f'''
    ; w13 source: row = r0 + 4w + (l>>4) ; piece = ((l&15)>>1) ^ ((l>>4) | (w>>1)<<2)
    s_sub_u32 s20, 8, s18
    s_lshl_b32 s21, s17, s20              ; r0
    v_lshl_add_u32 v5, v1, 2, v3
    v_add_u32 v5, s21, v5                 ; row
    v_mul_u32_u24 v6, 7168, v5
    v_bfe_u32 v7, v2, 1, 3                ; pos
    s_lshr_b32 s22, s54, 1
    s_lshl_b32 s22, s22, 2
    v_xor_b32 v7, v7, v3
    v_xor_b32 v7, s22, v7                 ; piece
    v_cmp_lt_u32 vcc, 3, v7               ; mat
    v_and_b32 v7, 3, v7
    v_and_b32 v8, 1, v2
    v_lshl_add_u32 v6, v7, 5, v6
    v_lshl_add_u32 v6, v8, 4, v6
    s_lshl_b32 s23, s16, 7                ; fb*128
    v_add_u32 v6, s23, v6
    ; x source: b*2048 + r0x*2 + (tid>>3)*16
    s_lshl_b32 s20, s18, 7
    s_sub_u32 s21, s21, s20               ; r0x
    s_lshl_b32 s21, s21, 1
    v_lshrrev_b32 v9, 3, v0
    v_lshlrev_b32 v9, 4, v9
    v_lshl_add_u32 v9, v4, 11, v9
    v_add_u32 v9, s21, v9
    s_mov_b64 s[42:43], {16*7168}
    s_lshl_b32 s38, s54, 10               ; w*1024
    s_add_u32 m0, s38, {L_X}
    s_mov_b32 s30, 16384
    s_mov_b32 s31, 0x20000
    s_lshl_b32 s39, s18, 15               ; split: tiles 4..7
    s_cmp_eq_u32 s18, 1
    s_cselect_b32 s20, 7, {n1-1}          ; loop count - 1
''' + (f'''
    s_lshl_b32 s40, s16, 15
    s_lshl_b32 s41, s17, 10
    s_add_u32 s40, s40, s41
    v_lshlrev_b32 v12, 4, v2
    v_lshl_add_u32 v12, v1, 13, v12
    v_add_u32 v12, s40, v12
''' if early is not None else '') + f'''
    s_or_b32 s21, s2, s54
    s_waitcnt lgkmcnt(0)
    s_cbranch_scc1 L_nonw
    s_or_b32 s37, s37, 0x80000000
    v_mov_b32 v10, s36
    v_mov_b32 v11, s37
    v_mov_b32 v8, 0
    s_mov_b64 exec, 1
    global_store_dwordx2 v8, v[10:11], s[50:51] sc1
    s_mov_b64 exec, -1
L_nonw:
''' + (f'''
    s_cmp_eq_u32 s19, 0
    s_cbranch_scc1 L_nxpt
    ; extras pre-touch the hop-1 lines of their (assumed) xcd: e = (q&3)*256 + tid
    s_and_b32 s40, s17, 3
    s_lshl_b32 s40, s40, 3
    v_lshrrev_b32 v12, 5, v0
    v_add_u32 v12, s40, v12               ; u = idx of the owner workgroup
    v_lshrrev_b32 v13, 2, v12             ; j
    v_and_b32 v12, 3, v12                 ; q
    v_cmp_eq_u32 s[40:41], 7, v13
    v_mov_b32 v14, s14
    v_add_u32 v15, 4, v12
    v_cndmask_b32 v13, v13, v14, s[40:41]
    v_cndmask_b32 v12, v12, v15, s[40:41]
    v_add_u32 v13, s12, v13               ; fb
    v_lshlrev_b32 v13, 15, v13
    v_lshl_add_u32 v13, v12, 10, v13
    v_bfe_u32 v12, v0, 3, 2
    v_lshl_add_u32 v13, v12, 13, v13
    v_lshl_add_u32 v13, v4, 7, v13
    global_load_dword v14, v13, s[52:53] {xpt}
''' + ((f'''
    s_and_b32 s40, s2, 7
    s_mul_i32 s40, s40, {32*RS}
    s_and_b32 s41, s17, 3
    s_mul_i32 s41, s41, {8*RS}
    s_add_u32 s40, s40, s41
    s_add_u32 s40, s40, {P2_OFF}
    v_lshlrev_b32 v13, 7, v0
    v_add_u32 v13, s40, v13
    global_load_dword v15, v13, s[52:53] {hp2}
    v_add_u32 v13, {8*RS-32768}, v13
    global_load_dword v16, v13, s[52:53] {hp2}
''' if hp2 is not None else '') + '    s_mov_b32 s17, 3\n    s_branch L_prec\n' if helpers else '') + f'''
L_nxpt:
''' if xpt is not None and xptpos == 0 else '') + f'''
''' + (f'    global_load_dwordx4 v[{A2}:{A2+3}], v12, s[52:53] {early}\n' if early is not None else '') + f'''
    s_mov_b32 s28, s4
    s_mov_b32 s29, s5
    v_mov_b32 v10, s6
    v_mov_b32 v11, s7
    v_mov_b32 v7, s8
    v_mov_b32 v8, s9
    buffer_load_dwordx4 v9, s[28:31], 0 offen lds
    v_cndmask_b32 v10, v10, v7, vcc
    v_cndmask_b32 v11, v11, v8, vcc
    v_add_co_u32 v126, vcc, v10, v6
    s_add_u32 m0, s38, s39
    s_nop 0
    v_addc_co_u32 v127, vcc, 0, v11, vcc
L_i13:
    global_load_lds_dwordx4 v[126:127], off {nt}
    v_lshl_add_u64 v[126:127], v[126:127], 0, s[42:43]
    s_addk_i32 m0, 0x1000
    s_sub_u32 s20, s20, 1
    s_cbranch_scc0 L_i13
''')
    stamp(1)
    a(f'''
L_prec:
    v_lshrrev_b32 v5, 5, v2
    v_lshl_add_u32 v5, v1, 1, v5          ; 2w + (l>>5)
    v_bfe_u32 v7, v2, 1, 4
    v_xor_b32 v7, v7, v5
    v_and_b32 v8, 1, v2
    v_lshlrev_b32 v{VW2}, 11, v5
    v_lshl_add_u32 v{VW2}, v7, 5, v{VW2}
    v_lshl_add_u32 v{VW2}, v8, 4, v{VW2}
    s_lshl_b32 s22, s16, 17               ; fb*64*2048
    s_lshl_b32 s21, s17, 9                ; q*512
    s_add_u32 s22, s22, s21
    s_mov_b32 s24, s10
    s_mov_b32 s25, s11
    s_cmp_lg_u32 s19, 0
    s_cselect_b32 s26, 0, 7340032
    s_mov_b32 s27, 0x20000
    s_mov_b32 s32, s52
    s_mov_b32 s33, s53
    s_mov_b32 s34, {WS_SIZE}
    s_mov_b32 s35, 0x20000
    s_mov_b32 s56, 0xff00ff00
    s_mov_b32 s57, 0xff00ff00
    v_mov_b32 v{VM1}, {M1}
    v_mov_b32 v{VM2}, {M2}
    v_bfe_u32 v5, v2, 2, 2                ; r
    v_and_b32 v6, 3, v2                   ; cq
    v_and_b32 v7, 1, v3
    v_lshl_add_u32 v7, v7, 2, v5          ; f
    v_lshl_add_u32 v8, v3, 3, v5          ; 8slab + r
    v_lshlrev_b32 v8, 8, v8
    v_lshl_add_u32 v8, v6, 3, v8
    v_add_u32 v8, s39, v8
    v_xor_b32 v9, v1, v7
    v_lshl_add_u32 v{VA0}, v9, 5, v8
    v_xor_b32 v{VA1}, 0x80, v{VA0}
    v_lshlrev_b32 v10, 4, v4              ; b*16
    v_lshl_add_u32 v{VX}, v3, 7, v10
    s_lshr_b32 s20, s39, 4
    s_add_u32 s20, s20, {L_X}
    v_add_u32 v{VX}, s20, v{VX}
    v_lshrrev_b32 v8, 1, v3
    v_lshl_add_u32 v8, v8, 4, v7
    v_lshlrev_b32 v8, 9, v8
    v_lshl_add_u32 v8, v6, 3, v8
    v_add_u32 v8, {L_W2}, v8
    v_lshlrev_b32 v9, 2, v1
    v_xor_b32 v9, v9, v7
    v_lshl_add_u32 v{VB}, v9, 5, v8
    v_xor_b32 v{VB+1}, 32, v{VB}
    v_xor_b32 v{VB+2}, 64, v{VB}
    v_xor_b32 v{VB+3}, 0x60, v{VB}
    s_lshl_b32 s20, s16, 15
    v_lshlrev_b32 v11, 4, v2              ; l*16
    v_lshl_add_u32 v{VG}, v1, 13, v11
    v_add_u32 v{VG}, s20, v{VG}
    s_lshl_b32 s71, s17, 10
    s_lshl_b32 s20, s18, 12
    s_add_u32 s20, s20, 0xfff
''')
    for i in range(7):
        a(f'    s_add_u32 s{64+i}, s{71 if i == 0 else 63+i}, 1024\n    s_and_b32 s{64+i}, s{64+i}, s20')
    a(f'''
    ; h image [kstep][slab][b][8 bf16]: read addr L_H + slab*128 + b*16 (+512 kstep 1)
    ; write addr L_H + w*256 + (mh&1)*128 + b*16 + (mh>>1)*8 + bit3*4
    v_add_u32 v8, {L_H}, v10
    v_lshl_add_u32 v{VHR}, v3, 7, v8
    v_lshl_add_u32 v8, v1, 8, v8
    v_and_b32 v9, 1, v3
    v_lshl_add_u32 v8, v9, 7, v8
    v_lshrrev_b32 v9, 1, v3
    v_lshl_add_u32 v8, v9, 3, v8
    v_bfe_u32 v9, v2, 3, 1                ; bit3
    v_lshl_add_u32 v{VHW}, v9, 2, v8
    ; P2 store addr: rho = (4q+w)*16 + (c + 2*bit3)*4 + mh ; P2_OFF + rho*7168 + fb*128 + b*16
    v_lshl_add_u32 v8, v1, 4, v3
    v_lshl_add_u32 v8, v9, 3, v8
    s_lshl_b32 s20, s17, 6
    v_add_u32 v8, s20, v8
    v_mul_u32_u24 v8, {RS}, v8
    s_add_u32 s20, s23, {P2_OFF}
''' + ('''
    s_lshl_b32 s45, s45, 3
    s_lshl_b64 s[46:47], 0xff, s45        ; lanes of own (assumed) xcd in a reducer load
''' if sent else '') + f'''
    v_add3_u32 v{VP2}, v8, v10, s20
    v_add_u32 v{VP2+1}, {4*RS}, v{VP2}
    ; reducer: read addr, out addr (col = 4*rho + r, r = l>>4)
''' + ('''
    s_and_b32 s13, s2, 7
    s_lshl_b32 s13, s13, 5
    s_lshr_b32 s12, s2, 3
    s_add_u32 s13, s13, s12               ; rho: one xcd owns whole output lines
''' if rmap else '    s_mov_b32 s13, s2\n') + f'''
    s_mul_i32 s12, s13, {RS}
    s_add_u32 s12, s12, {P2_OFF + 3072}
    v_add_u32 v{VRD}, s12, v11
    s_lshl_b32 s12, s13, 2
    v_add_u32 v{VOUT}, s12, v3
    v_lshl_add_u32 v{VOUT}, v4, 10, v{VOUT}
    v_lshlrev_b32 v{VOUT}, 1, v{VOUT}
''')
    for i in range(8):
        a(f'    v_mov_b32 v{AG+i}, 0')
    if n1 < 16:
        a(f'''
    s_cmp_eq_u32 s18, 1
    s_cbranch_scc1 L_i13d
    s_mov_b32 s20, {15-n1}
L_i13b:
    global_load_lds_dwordx4 v[126:127], off {nt}
    v_lshl_add_u64 v[126:127], v[126:127], 0, s[42:43]
    s_addk_i32 m0, 0x1000
    s_sub_u32 s20, s20, 1
    s_cbranch_scc0 L_i13b
L_i13d:
''')
    npt = 0
    if ps1 is not None:
        a(f'    buffer_store_dwordx4 v[{AG}:{AG+3}], v{VG}, s[32:35], s71 offen {ps1}')
        npt += 1
    if ps2 is not None:
        a(f'    global_store_dwordx4 v{VP2}, v[{AG}:{AG+3}], s[52:53] {ps2}')
        a(f'    global_store_dwordx4 v{VP2+1}, v[{AG}:{AG+3}], s[52:53] {ps2}')
        npt += 2
    if pt is not None:
        a(f'    buffer_load_dwordx4 v[{A2}:{A2+3}], v{VG}, s[32:35], s71 offen {pt}')
        npt += 1
    if helpers:
        a('    s_cmp_lg_u32 s19, 0\n    s_cbranch_scc1 L_help')
    a(f'''
    s_mov_b32 s21, 0
    s_lshl_b32 s44, s18, 1
L_pl:
    s_cmp_lt_u32 s21, s44
    s_cbranch_scc1 L_iss
    s_waitcnt vmcnt({12+npt})
''')
    if g1 < 4:
        a(f'''
    s_cmp_lt_u32 s21, 2
    s_cbranch_scc1 L_pl2
    s_waitcnt vmcnt({8+g1+npt})
L_pl2:
''')
    a('    s_barrier')
    def trreads(dst, off):
        a(f'''
    ds_read_b64_tr_b16 v[{dst}:{dst+1}], v{VA0} offset:{off}
    ds_read_b64_tr_b16 v[{dst+2}:{dst+3}], v{VA0} offset:{off+1024}
    ds_read_b64_tr_b16 v[{dst+4}:{dst+5}], v{VA1} offset:{off}
    ds_read_b64_tr_b16 v[{dst+6}:{dst+7}], v{VA1} offset:{off+1024}
''')
    def mf(acc, f, x):
        a(f'    v_mfma_f32_16x16x32_bf16 v[{acc}:{acc+3}], v[{f}:{f+3}], v[{x}:{x+3}], v[{acc}:{acc+3}]')
    X0 = FB + 16; X1 = FB + 20
    a(f'    ds_read_b128 v[{X0}:{X0+3}], v{VX}')
    trreads(FB, 0)
    a(f'    ds_read_b128 v[{X1}:{X1+3}], v{VX} offset:512')
    trreads(FB+8, 8192)
    a(f'''
    v_add_u32 v{VA0}, 16384, v{VA0}
    v_add_u32 v{VA1}, 16384, v{VA1}
    v_add_u32 v{VX}, 1024, v{VX}
    s_cmp_eq_u32 s21, 2
    s_waitcnt lgkmcnt(5)
''')
    mf(AG, FB, X0); mf(AU, FB+4, X0)
    a('    s_waitcnt lgkmcnt(0)')
    mf(AG, FB+8, X1); mf(AU, FB+12, X1)
    a(f'''
    s_cbranch_scc1 L_pdone
L_iss:
''' + ('    s_mov_b32 s20, 3\n' if g1 == 4 else f'    s_cmp_eq_u32 s21, 0\n    s_cselect_b32 s20, 3, {g1-1}\n') + f'''
    s_add_u32 s21, s21, 1
''' + ('    s_cmp_lt_i32 s20, 0\n    s_cbranch_scc1 L_pl\n' if g1 == 0 else '') + f'''
L_i2:
    buffer_load_dwordx4 v{VW2}, s[24:27], s22 offen {nt} lds
    s_add_u32 s22, s22, 16384
    s_addk_i32 m0, 0x1000
    s_sub_u32 s20, s20, 1
    s_cbranch_scc0 L_i2
    s_branch L_pl
L_pdone:
''')
    stamp(9)
    a(f'''
    ds_read_b128 v[{T1}:{T1+3}], v{VT}
    ds_read_b128 v[{T2}:{T2+3}], v{VT} offset:16
    ds_read_b128 v[{X0}:{X0+3}], v{VX}
    ds_read_b128 v[{X1}:{X1+3}], v{VX} offset:512
    s_waitcnt vmcnt({6+g1+npt})
    s_barrier
''')
    trreads(FB, 0)
    a('    s_waitcnt lgkmcnt(0)')
    mf(AG, FB, X0); mf(AU, FB+4, X0)
    a(f'''
    s_waitcnt vmcnt({4+g1})
    s_barrier
''')
    stamp(2)
    trreads(FB+8, 8192)
    a('    s_waitcnt lgkmcnt(2)')
    mf(AG, FB+8, X1)
    a('    s_waitcnt lgkmcnt(0)')
    mf(AU, FB+12, X1)
    a('    s_cmp_eq_u32 s18, 1\n    s_nop 6')
    for r in range(4):
        a(f'    v_cndmask_b32 v{8+r}, v{AG+r}, v{AU+r}, s[56:57]')
    for r in range(4):
        a(f'    v_add_u32 v{124+r}, {(M1+1)//2}, v{8+r}')
    for r in range(4):
        a(f'    v_bfi_b32 v{124+r}, v{VM1}, v{T1+r}, v{124+r}')
    a(f'    buffer_store_dwordx4 v[124:127], v{VG}, s[32:35], s71 offen {"sc1" if p1sc else ""}')
    if clean:
        a(f'    v_mov_b32 v27, v{VG}')
    stamp(3)
    def gather(lo, hi, fl=None):
        for i in range(lo, hi):
            a(f'    buffer_load_dwordx4 v[{G+4*i}:{G+4*i+3}], v{VG}, s[32:35], s{64+i} offen {fl or gld}')
    def h2():
        for _ in range(4 - g1):
            a(f'''
    buffer_load_dwordx4 v{VW2}, s[24:27], s22 offen {nt} lds
    s_add_u32 s22, s22, 16384
    s_addk_i32 m0, 0x1000
    s_cmp_eq_u32 s18, 1
''')
    h2()
    if gafter:
        a('    s_waitcnt vmcnt(0)')
    if gdelay:
        a(f'    s_sleep {gdelay}')
    for k in range(stag + 1):
        if k and gland and k == stag:
            a(f'    s_cbranch_scc0 L_gw\n    s_waitcnt vmcnt({7*k})\n    s_branch L_gw2\nL_gw:\n    s_waitcnt vmcnt({3*k})\nL_gw2:')
        elif k:
            a(f'    s_sleep {stagsl}')
        a(f'    s_cbranch_scc0 L_g{k}')
        gather(3, 7)
        a(f'L_g{k}:')
        gather(0, 3)
    if not gland:
        a(f'    s_waitcnt vmcnt({3*(stag+1)+(1 if g1 == 4 else 0)})')
    a('    s_barrier')
    stamp(4)
    for s in range(2):
        for c in range(4):
            for hh in range(2):
                d = F2 + 16*s + 4*c + 2*hh
                a(f'    ds_read_b64_tr_b16 v[{d}:{d+1}], v{VB+c} offset:{16384*s + 4096*hh}')
    a('L_poll1:')
    a('    s_waitcnt vmcnt(0)')
    for i in range(3):
        for k in range(4):
            a(f'    v_xor_b32 v{G+4*i+k}, v{T1+k}, v{G+4*i+k}')
    orchain(a, 5, range(G, G+12))
    a(f'''
    v_pk_add_f32 v[{AG}:{AG+1}], v[8:9], v[{G}:{G+1}]
    v_pk_add_f32 v[{AG+2}:{AG+3}], v[10:11], v[{G+2}:{G+3}]
    v_pk_add_f32 v[{AU}:{AU+1}], v[{G+4}:{G+5}], v[{G+8}:{G+9}]
    v_pk_add_f32 v[{AU+2}:{AU+3}], v[{G+6}:{G+7}], v[{G+10}:{G+11}]
    s_cbranch_scc1 L_more
L_hcalc:
    v_and_b32 v5, v{VM1}, v5
    v_pk_add_f32 v[{AG}:{AG+1}], v[{AG}:{AG+1}], v[{AU}:{AU+1}]
    v_pk_add_f32 v[{AG+2}:{AG+3}], v[{AG+2}:{AG+3}], v[{AU+2}:{AU+3}]
    v_cmp_ne_u32 vcc, 0, v5
    v_cvt_pk_bf16_f32 v6, v{AG}, v{AG+1}
    v_cvt_pk_bf16_f32 v7, v{AG+2}, v{AG+3}
    v_cvt_pk_bf16_f32 v5, v{AG+2}, v{AG+3}
    s_cbranch_vccnz L_retry1
''')
    stamp(10 - 0) if False else None
    a(f'''
    v_mov_b32_dpp v7, v6 row_ror:8 row_mask:0xf bank_mask:0x3
    v_mov_b32_dpp v6, v5 row_ror:8 row_mask:0xf bank_mask:0xc
    v_lshlrev_b32 v{AU}, 16, v7
    v_and_b32 v{AU+1}, 0xffff0000, v7
    v_lshlrev_b32 v{AG}, 16, v6
    v_and_b32 v{AG+1}, 0xffff0000, v6
    v_mul_f32 v{AG+2}, 0xbfb8aa3b, v{AG}
    v_mul_f32 v{AG+3}, 0xbfb8aa3b, v{AG+1}
    v_exp_f32 v{AG+2}, v{AG+2}
    v_exp_f32 v{AG+3}, v{AG+3}
    s_nop 0
    v_add_f32 v{AG+2}, 1.0, v{AG+2}
    v_add_f32 v{AG+3}, 1.0, v{AG+3}
    v_rcp_f32 v{AG+2}, v{AG+2}
    v_rcp_f32 v{AG+3}, v{AG+3}
    s_nop 0
    v_mul_f32 v{AG+2}, v{AG}, v{AG+2}
    v_mul_f32 v{AG+3}, v{AG+1}, v{AG+3}
    v_cvt_pk_bf16_f32 v6, v{AG+2}, v{AG+3}
    v_lshlrev_b32 v{AG}, 16, v6
    v_and_b32 v{AG+1}, 0xffff0000, v6
    v_mul_f32 v{AG}, v{AG}, v{AU}
    v_mul_f32 v{AG+1}, v{AG+1}, v{AU+1}
    v_cvt_pk_bf16_f32 v6, v{AG}, v{AG+1}
    ds_write_b32 v{VHW}, v6
    s_cmp_lg_u32 s19, 0
    s_waitcnt lgkmcnt(0)
    s_barrier
''')
    stamp(5)
    a(f'''
    ds_read_b128 v[{AG}:{AG+3}], v{VHR}
    ds_read_b128 v[{AU}:{AU+3}], v{VHR} offset:512
    s_cbranch_scc1 L_extra
    s_waitcnt lgkmcnt(1)
''')
    for s in range(2):
        if s == 1:
            a('    s_waitcnt lgkmcnt(0)')
        hb = AG if s == 0 else AU
        for c in (0, 2, 1, 3):
            cin = '0' if s == 0 else f'v[{A2+4*c}:{A2+4*c+3}]'
            f = F2 + s*16 + 4*c
            a(f'    v_mfma_f32_16x16x32_bf16 v[{A2+4*c}:{A2+4*c+3}], v[{f}:{f+3}], v[{hb}:{hb+3}], {cin}')
    a('    s_cmp_lg_u32 s54, 0\n    s_nop 4')
    for c in range(2):
        for r in range(4):
            a(f'    v_cndmask_b32 v{A2+4*c+r}, v{A2+4*c+r}, v{A2+8+4*c+r}, s[56:57]')
        for r in range(4):
            a(f'    v_bfi_b32 v{A2+4*c+r}, v{VM2}, v{T2+r}, v{A2+4*c+r}')
        a(f'    global_store_dwordx4 v{VP2+c}, v[{A2+4*c}:{A2+4*c+3}], s[52:53] sc1')
    stamp(6)
    CL = '    buffer_store_dwordx4 v[124:127], v27, s[32:35], s71 offen sc1'
    if clean == 1:
        a(CL)
    SL = f'    global_load_dwordx4 v[{G}:{G+3}], v{VRD}, s[52:53] offset:{1024*sj-3072} sc1'
    if sent == 1:
        a('    s_cbranch_scc1 L_wend')
        a(SL)
    a('    s_waitcnt vmcnt(0)')
    if sent != 1:
        a('    s_cbranch_scc1 L_end')
    a('    s_barrier')
    if sent == 2:
        a('L_sent0:')
        a(SL)
        a('    s_waitcnt vmcnt(0)')
    if sent:
        a(f'''
L_sent:
    v_xor_b32 v{G}, v{T2}, v{G}
    v_xor_b32 v{G+1}, v{T2+1}, v{G+1}
    v_and_or_b32 v5, v{G}, v{VM2}, 0
    v_and_or_b32 v5, v{G+1}, v{VM2}, v5
    v_cmp_ne_u32 vcc, 0, v5
    s_andn2_b64 vcc, vcc, s[46:47]
    s_cbranch_scc1 L_sretry
''')
    a('L_poll2:')
    for i in range(7):
        a(f'    global_load_dwordx4 v[{G+4*i}:{G+4*i+3}], v{VRD}, s[52:53] offset:{1024*i-3072} sc1')
    for i in range(7):
        a(f'    s_waitcnt vmcnt({6-i})')
        for k in range(4):
            a(f'    v_xor_b32 v{G+4*i+k}, v{T2+k}, v{G+4*i+k}')
        if i == 0:
            a(f'    v_or3_b32 v5, v{G}, v{G+1}, v{G+2}')
            a(f'    v_or_b32 v5, v5, v{G+3}')
        else:
            a(f'    v_or3_b32 v5, v5, v{G+4*i}, v{G+4*i+1}')
            a(f'    v_or3_b32 v5, v5, v{G+4*i+2}, v{G+4*i+3}')
            src = 8 if i > 1 else G
            a(f'    v_pk_add_f32 v[8:9], v[{src}:{src+1}], v[{G+4*i}:{G+4*i+1}]')
            a(f'    v_pk_add_f32 v[10:11], v[{src+2}:{src+3}], v[{G+4*i+2}:{G+4*i+3}]')
    a(f'''
    v_and_b32 v5, v{VM2}, v5
    v_cmp_ne_u32 vcc, 0, v5
    v_permlane32_swap_b32 v8, v10
    v_permlane32_swap_b32 v9, v11
    s_cbranch_vccnz L_retry2
''')
    stamp(7)
    a(f'''
    v_add_f32 v8, v8, v10
    v_add_f32 v9, v9, v11
    s_nop 1
    v_permlane16_swap_b32 v8, v9
    s_nop 0
    v_add_f32 v8, v8, v9
    s_nop 1
    v_add_f32_dpp v8, v8, v8 row_ror:8 row_mask:0xf bank_mask:0xf
    s_mov_b64 exec, s[56:57]
    v_cvt_pk_bf16_f32 v8, v8, v8
    global_store_short v{VOUT}, v8, s[48:49] {outsc}
''')
    if stamps:
        a('    s_waitcnt vmcnt(0)')
        stamp(8)
        a('    s_branch L_dump')
    a('L_end:')
    if stamps:
        stamp(7)
        a('''
    s_barrier
L_dump0:
    s_sleep 60
L_dump:
    s_mov_b64 exec, -1
    s_waitcnt lgkmcnt(0)
    s_add_u32 s92, s60, s72
    s_addc_u32 s93, 0, s73
    s_mov_b64 s[94:95], s[72:73]
''')
        for i in range(2*NST):
            a(f'    v_mov_b32 v{64+i}, s{72+i}')
        a(f'''
    s_lshl_b32 s12, s54, 8
    s_add_u32 s12, s12, s2
    s_mul_i32 s12, s12, {NST*8}
    s_add_u32 s12, s12, {STAMP_OFF}
    v_mov_b32 v5, s12
    s_mov_b64 exec, 1
''')
        for i in range(NST//2):
            a(f'    global_store_dwordx4 v5, v[{64+4*i}:{67+4*i}], s[52:53] offset:{16*i}')
    a(f'''
L_exit:
    s_endpgm
L_extra:
''' + (f'    s_sleep 6\n{CL}\n' if clean else '') + f'''
    s_cmp_lg_u32 s54, 0
    s_cbranch_scc1 {'L_dump0' if stamps else 'L_exit'}
    s_sleep {xsleep}                            ; polling back-off: no own stores to wait for
    s_branch {'L_sretry' if sent else 'L_poll2'}
''' + (f'''
L_wend:
    s_waitcnt vmcnt(0)
    s_branch L_end
L_sretry:
{SL}
    s_add_u32 s60, s60, 1
    s_cmp_lt_u32 s60, 0x400000
    s_waitcnt vmcnt(0)
    s_cbranch_scc1 L_sent
    s_endpgm
''' if sent else '') + f'''
L_retry2:
    s_add_u32 s60, s60, 1
    s_cmp_lt_u32 s60, 0x400000
    s_cbranch_scc1 L_poll2
    s_endpgm
L_more:
''')
    for i in range(3, 7):
        for k in range(4):
            a(f'    v_xor_b32 v{G+4*i+k}, v{T1+k}, v{G+4*i+k}')
    orchain(a, 5, range(G+12, G+28), first=False)
    for i in range(3, 7):
        acc = AG if i & 1 else AU
        a(f'    v_pk_add_f32 v[{acc}:{acc+1}], v[{acc}:{acc+1}], v[{G+4*i}:{G+4*i+1}]')
        a(f'    v_pk_add_f32 v[{acc+2}:{acc+3}], v[{acc+2}:{acc+3}], v[{G+4*i+2}:{G+4*i+3}]')
    a('    s_branch L_hcalc')
    if helpers:
        a(f'''
L_help:
    s_cmp_lg_u32 s54, 0
    s_cbranch_scc1 L_exit
    s_barrier
    ds_read_b128 v[{T1}:{T1+3}], v{VT}
    ds_read_b128 v[{T2}:{T2+3}], v{VT} offset:16
L_help1:
    s_sleep 4
    buffer_load_dwordx4 v[{G}:{G+3}], v{VG}, s[32:35], s64 offen sc1
    s_add_u32 s60, s60, 1
    s_cmp_gt_u32 s60, 200
    s_waitcnt vmcnt(0) lgkmcnt(0)
    s_cbranch_scc1 L_poll2
    v_xor_b32 v5, v{T1}, v{G}
    v_and_b32 v5, v{VM1}, v5
    v_cmp_ne_u32 vcc, 0, v5
    s_cbranch_vccnz L_help1
    s_sleep 30
    s_branch L_poll2
''')
    a(f'''
L_aux:
    s_setprio 3
    v_mov_b32 v8, 0
    s_getreg_b32 s20, hwreg(HW_REG_XCC_ID)
    s_waitcnt lgkmcnt(0)
''' + (f'''
    s_and_b32 s21, s2, 127
    s_lshl_b32 s21, s21, 7
    v_mov_b32 v9, s21
    global_load_dword v10, v9, s[48:49] {otouch}
''' if otouch is not None else '') + f'''
    s_sleep {auxsleep}                            ; polling back-off before reading the nonce
    global_load_dwordx2 v[28:29], v8, s[50:51] sc1
    s_sleep {aux2}
    global_load_dwordx2 v[30:31], v8, s[50:51] sc1
    s_and_b32 s20, s20, {0 if p1sc else 7}
    s_lshl_b32 s20, s20, 7
    s_cmp_eq_u32 s18, 1
    s_cbranch_scc1 L_aux0
    s_barrier
    s_barrier
L_aux0:
    s_waitcnt vmcnt(1)
    v_cmp_lt_i32 vcc, -1, v29
    s_cbranch_vccz L_aux2
L_aux1:
    s_waitcnt vmcnt(0)
    v_mov_b32 v28, v30
    v_mov_b32 v29, v31
    v_cmp_lt_i32 vcc, -1, v31             ; nonce not yet valid
    s_cbranch_vccnz L_nretry
L_aux2:
    v_and_b32 v{T1}, {M1}, v28
    v_bfe_u32 v{T1+1}, v28, 10, 10
    v_bfe_u32 v{T1+2}, v28, 20, 10
    v_alignbit_b32 v5, v29, v28, 30
    v_and_b32 v5, {M1}, v5
    v_xor_b32 v{T1+3}, s20, v5
    v_and_b32 v{T2}, {M2}, v28
    v_bfe_u32 v{T2+1}, v28, 12, 12
    v_alignbit_b32 v5, v29, v28, 24
    v_and_b32 v{T2+2}, {M2}, v5
    v_bfe_u32 v{T2+3}, v29, 4, 12
    ds_write_b128 v{VT}, v[{T1}:{T1+3}]
    ds_write_b128 v{VT}, v[{T2}:{T2+3}] offset:16
    s_waitcnt lgkmcnt(0)
''')
    stamp(3)
    if stamps:
        a('    s_barrier\n    s_barrier\n    s_barrier\n    s_barrier\n    s_barrier\n    s_cmp_lg_u32 s19, 0\n    s_cbranch_scc1 L_dump0\n    s_branch L_end')
    a(f'''
    s_endpgm
''' + ('' if hotretry else 'L_codeend:\n') + f'''
L_nretry:
    global_load_dwordx2 v[30:31], v8, s[50:51] sc1
    s_add_u32 s60, s60, 1
    s_cmp_lt_u32 s60, 0x400000
    s_cbranch_scc1 L_aux1
    s_endpgm
L_retry1:
    s_cmp_lt_u32 s60, {0x7fffffff if p1sc else KF}
    s_cbranch_scc1 L_r1a
    s_getreg_b32 s20, hwreg(HW_REG_XCC_ID)
    s_and_b32 s20, s20, 7
    s_lshl_b32 s20, s20, 7
    v_xor_b32 v{T1+3}, s20, v{T1+3}       ; toggle tag between plain (xcc-mixed) and safe form
    v_xor_b32 v{VG}, {P1_SAFE}, v{VG}
    s_cmp_eq_u32 s60, {KF}
    s_cbranch_scc0 L_r1a
''')
    for r in range(4):
        a(f'    v_bfi_b32 v{AG+r}, v{VM1}, v{T1+r}, v{124+r}')
    a(f'''
    buffer_store_dwordx4 v[{AG}:{AG+3}], v{VG}, s[32:35], s71 offen sc1
    s_waitcnt vmcnt(0)
L_r1a:
    s_add_u32 s60, s60, 1
    s_cmp_ge_u32 s60, 0x400000
    s_cbranch_scc1 L_exit
    s_cmp_eq_u32 s18, 1
    s_cbranch_scc0 L_r1b
''')
    gather(3, 7, 'sc1')
    a('L_r1b:')
    gather(0, 3, 'sc1')
    a('    s_branch L_poll1')
    if hotretry:
        a('L_codeend:')
    a(RODATA)
    a(kdesc(KNAME, 128, 100))
    open(fname, 'w').write(a.text())
if __name__ == '__main__':
    B = dict(gland=True, KF=10, rmap=True)
    V = dict(
      r=dict(),
    )
    for k, v in V.items():
        gen(f'v7_{k}.s', **{**B, **v})
        gen(f'v7_{k}_st.s', stamps=True, **{**B, **v})
    HDR = '''; SwiGLU decode (B=8, D=1024, F=3584), one fused launch.  out = (silu(x@w1) * (x@w3)) @ w2
'''
    t = open('v7_r.s').read().replace('; generated\n', HDR)
    import re
    t = re.sub(r'\n\n+', '\n', t)
    open('final.s', 'w').write(t)
```

```python
import sys
from genlib import *
P1_SAFE = 4 << 20
P2_OFF = 2 << 20
WS_SIZE = 8 << 20
STAMP_OFF = 128 << 20
M1 = 0x3ff
M2 = 0xfff
L_W2 = 65536
L_X = 98304
L_H = 102400
L_T = 103424
LDS_SIZE = 103488

def orchain(a, dst, regs, first=True):
    regs = list(regs)
    i = 0
    if first:
        a(f'    v_or3_b32 v{dst}, v{regs[0]}, v{regs[1]}, v{regs[2]}')
        i = 3
    while i + 1 < len(regs):
        a(f'    v_or3_b32 v{dst}, v{dst}, v{regs[i]}, v{regs[i+1]}')
        i += 2
    if i < len(regs):
        a(f'    v_or_b32 v{dst}, v{dst}, v{regs[i]}')

def gen(fname, nt='nt', stamps=False, codepf=0x18, auxsleep=10, aux2=16, stag=1, stagsl=8, xsleep=14, KF=24, pt=None, gdelay=0, p1sc=False, xmap=False, gafter=False, gld='sc1', g1=4, h2first=True, ps1=None, ps2=None, early=None, outsc='', clean=0, sent=0, sj=0, otouch=None, gland=False, hotretry=True, rmap=False, RS=7168, n1=16, bal=False, xpt=None, xptpos=0, helpers=False, hp2=None):
    a = Asm()
    a(header([(KNAME, 256, 320, LDS_SIZE)]))
    a(kstart(KNAME))
    NST = 12
    def stamp(i):
        if stamps:
            a(f'    s_memrealtime s[{72+2*i}:{73+2*i}]')
    T1 = 12; T2 = 16; VM1 = 20; VM2 = 21; VG = 22; VRD = 23; VW2 = 24; VT = 25; VOUT = 26
    VA0 = 28; VA1 = 29; VX = 30; VHW = 31
    FB = 32
    G = 32
    AG = 60; AU = 64
    VB = 68
    VHR = 72; VP2 = 73
    F2 = 76
    A2 = 108
    if stamps:
        for i in range(1, NST):
            a(f'    s_mov_b64 s[{72+2*i}:{73+2*i}], 0')
    stamp(0)
    if codepf:
        a(f'''
    s_and_b32 s3, s2, {codepf}
    s_cbranch_scc1 L_nopf
    s_getpc_b64 s[20:21]
L_pc:
    v_lshlrev_b32 v5, 4, v0
    v_min_u32 v5, L_codeend-L_pc-4, v5
    global_load_dword v27, v5, s[20:21]
L_nopf:
''')
    a(f'''
    s_cmp_ge_u32 s2, 256
    s_cbranch_scc1 L_exit
    s_load_dwordx8 s[4:11], s[0:1], 0     ; x, w1, w3, w2
    s_load_dwordx4 s[48:51], s[0:1], 32
    s_load_dwordx2 s[52:53], s[0:1], 48   ; ws
    s_memrealtime s[36:37]
    v_lshrrev_b32 v1, 6, v0               ; wave
    v_and_b32 v2, 63, v0                  ; lane
    v_readfirstlane_b32 s54, v1
    v_lshrrev_b32 v3, 4, v2
    v_and_b32 v4, 7, v2                   ; b
    v_mov_b32 v{VT}, {L_T}
    s_mov_b32 s60, 0
''')
    if bal:
        a('''
    s_and_b32 s12, s2, 7
    s_lshr_b32 s13, s2, 3                 ; idx
    s_lshr_b32 s15, s13, 2
    s_lshl_b32 s14, s12, 3                ; 8x
    s_lshl_b32 s16, s12, 2
    s_add_u32 s16, s16, 16                ; 32 + 4(x-4)
    s_cmp_lt_u32 s12, 4
    s_cselect_b32 s14, s14, s16
    s_add_u32 s14, s14, s15
    s_mul_i32 s15, s14, 37
    s_lshr_b32 s15, s15, 8                ; n/7
    s_add_u32 s16, s14, s15               ; 8(n/7) + n%7
    s_and_b32 s17, s16, 7
    s_cmp_ge_u32 s17, 3
    s_addc_u32 s16, s16, 0
    s_lshl_b32 s14, s12, 4
    s_and_b32 s15, s13, 8
    s_add_u32 s14, s14, s15
    s_sub_u32 s14, s14, 61                ; 8s+3, s = 2(x-4) + ((idx>>3)&1)
    s_min_u32 s14, s14, 55
    s_and_b32 s15, s2, 0x84
    s_cmp_eq_u32 s15, 0x84
    s_cselect_b32 s16, s14, s16
    s_cselect_b32 s18, 1, 0
    s_cselect_b32 s17, 7, 3
    s_and_b32 s17, s17, s13               ; q
    s_and_b32 s19, s17, 4
''')
    elif not xmap:
        a('''
    s_and_b32 s12, s2, 7
    s_lshr_b32 s13, s2, 3                 ; idx
    s_add_u32 s14, s12, 3
    s_and_b32 s14, s14, 7
    s_cmp_eq_u32 s14, 7
    s_cselect_b32 s14, 3, s14
    s_lshr_b32 s15, s13, 2                ; j (7 -> extra)
    s_and_b32 s17, s13, 3                 ; q
    s_cmp_eq_u32 s15, 7
    s_cselect_b32 s15, s14, s15
    s_cselect_b32 s19, 4, 0
    s_add_u32 s17, s17, s19
    s_mul_i32 s12, s12, 7
    s_add_u32 s16, s12, s15               ; fb
    s_cmp_eq_u32 s15, s14
    s_cselect_b32 s18, 1, 0
''')
    else:
        a('''
    s_lshr_b32 s16, s2, 2                 ; unit
    s_and_b32 s17, s2, 3                  ; q
    s_sub_u32 s12, s16, 56
    s_lshl_b32 s12, s12, 3
    s_add_u32 s12, s12, 3
    s_cmp_eq_u32 s16, 63
    s_cselect_b32 s12, 31, s12
    s_cmp_ge_u32 s16, 56
    s_cselect_b32 s16, s12, s16           ; fb
    s_cselect_b32 s19, 4, 0
    s_add_u32 s17, s17, s19
    s_and_b32 s12, s16, 7
    s_cmp_eq_u32 s12, 3
    s_cselect_b32 s18, 1, 0
    s_cmp_eq_u32 s16, 31
    s_cselect_b32 s18, 1, s18
''')
    a(f'''
''' + ('''
    s_mov_b32 s18, 0
    s_cmp_lg_u32 s19, 0
    s_cselect_b32 s16, s12, s16
    s_cselect_b32 s18, 1, 0
''' if helpers else '') + f'''
    s_cmp_eq_u32 s54, 4
    s_cbranch_scc1 L_aux
''' + ('    s_mov_b32 s18, 0\n' if helpers else '') + f'''
    ; w13 source: row = r0 + 4w + (l>>4) ; piece = ((l&15)>>1) ^ ((l>>4) | (w>>1)<<2)
    s_sub_u32 s20, 8, s18
    s_lshl_b32 s21, s17, s20              ; r0
    v_lshl_add_u32 v5, v1, 2, v3
    v_add_u32 v5, s21, v5                 ; row
    v_mul_u32_u24 v6, 7168, v5
    v_bfe_u32 v7, v2, 1, 3                ; pos
    s_lshr_b32 s22, s54, 1
    s_lshl_b32 s22, s22, 2
    v_xor_b32 v7, v7, v3
    v_xor_b32 v7, s22, v7                 ; piece
    v_cmp_lt_u32 vcc, 3, v7               ; mat
    v_and_b32 v7, 3, v7
    v_and_b32 v8, 1, v2
    v_lshl_add_u32 v6, v7, 5, v6
    v_lshl_add_u32 v6, v8, 4, v6
    s_lshl_b32 s23, s16, 7                ; fb*128
    v_add_u32 v6, s23, v6
    ; x source: b*2048 + r0x*2 + (tid>>3)*16
    s_lshl_b32 s20, s18, 7
    s_sub_u32 s21, s21, s20               ; r0x
    s_lshl_b32 s21, s21, 1
    v_lshrrev_b32 v9, 3, v0
    v_lshlrev_b32 v9, 4, v9
    v_lshl_add_u32 v9, v4, 11, v9
    v_add_u32 v9, s21, v9
    s_mov_b64 s[42:43], {16*7168}
    s_lshl_b32 s38, s54, 10               ; w*1024
    s_add_u32 m0, s38, {L_X}
    s_mov_b32 s30, 16384
    s_mov_b32 s31, 0x20000
    s_lshl_b32 s39, s18, 15               ; split: tiles 4..7
    s_cmp_eq_u32 s18, 1
    s_cselect_b32 s20, 7, {n1-1}          ; loop count - 1
''' + (f'''
    s_lshl_b32 s40, s16, 15
    s_lshl_b32 s41, s17, 10
    s_add_u32 s40, s40, s41
    v_lshlrev_b32 v12, 4, v2
    v_lshl_add_u32 v12, v1, 13, v12
    v_add_u32 v12, s40, v12
''' if early is not None else '') + f'''
    s_or_b32 s21, s2, s54
    s_waitcnt lgkmcnt(0)
    s_cbranch_scc1 L_nonw
    s_or_b32 s37, s37, 0x80000000
    v_mov_b32 v10, s36
    v_mov_b32 v11, s37
    v_mov_b32 v8, 0
    s_mov_b64 exec, 1
    global_store_dwordx2 v8, v[10:11], s[50:51] sc1
    s_mov_b64 exec, -1
L_nonw:
''' + (f'''
    s_cmp_eq_u32 s19, 0
    s_cbranch_scc1 L_nxpt
    ; extras pre-touch the hop-1 lines of their (assumed) xcd: e = (q&3)*256 + tid
    s_and_b32 s40, s17, 3
    s_lshl_b32 s40, s40, 3
    v_lshrrev_b32 v12, 5, v0
    v_add_u32 v12, s40, v12               ; u = idx of the owner workgroup
    v_lshrrev_b32 v13, 2, v12             ; j
    v_and_b32 v12, 3, v12                 ; q
    v_cmp_eq_u32 s[40:41], 7, v13
    v_mov_b32 v14, s14
    v_add_u32 v15, 4, v12
    v_cndmask_b32 v13, v13, v14, s[40:41]
    v_cndmask_b32 v12, v12, v15, s[40:41]
    v_add_u32 v13, s12, v13               ; fb
    v_lshlrev_b32 v13, 15, v13
    v_lshl_add_u32 v13, v12, 10, v13
    v_bfe_u32 v12, v0, 3, 2
    v_lshl_add_u32 v13, v12, 13, v13
    v_lshl_add_u32 v13, v4, 7, v13
    global_load_dword v14, v13, s[52:53] {xpt}
''' + ((f'''
    s_and_b32 s40, s2, 7
    s_mul_i32 s40, s40, {32*RS}
    s_and_b32 s41, s17, 3
    s_mul_i32 s41, s41, {8*RS}
    s_add_u32 s40, s40, s41
    s_add_u32 s40, s40, {P2_OFF}
    v_lshlrev_b32 v13, 7, v0
    v_add_u32 v13, s40, v13
    global_load_dword v15, v13, s[52:53] {hp2}
    v_add_u32 v13, {8*RS-32768}, v13
    global_load_dword v16, v13, s[52:53] {hp2}
''' if hp2 is not None else '') + '    s_mov_b32 s17, 3\n    s_branch L_prec\n' if helpers else '') + f'''
L_nxpt:
''' if xpt is not None and xptpos == 0 else '') + f'''
''' + (f'    global_load_dwordx4 v[{A2}:{A2+3}], v12, s[52:53] {early}\n' if early is not None else '') + f'''
    s_mov_b32 s28, s4
    s_mov_b32 s29, s5
    v_mov_b32 v10, s6
    v_mov_b32 v11, s7
    v_mov_b32 v7, s8
    v_mov_b32 v8, s9
    buffer_load_dwordx4 v9, s[28:31], 0 offen lds
    v_cndmask_b32 v10, v10, v7, vcc
    v_cndmask_b32 v11, v11, v8, vcc
    v_add_co_u32 v126, vcc, v10, v6
    s_add_u32 m0, s38, s39
    s_nop 0
    v_addc_co_u32 v127, vcc, 0, v11, vcc
L_i13:
    global_load_lds_dwordx4 v[126:127], off {nt}
    v_lshl_add_u64 v[126:127], v[126:127], 0, s[42:43]
    s_addk_i32 m0, 0x1000
    s_sub_u32 s20, s20, 1
    s_cbranch_scc0 L_i13
''')
    stamp(1)
    a(f'''
L_prec:
    v_lshrrev_b32 v5, 5, v2
    v_lshl_add_u32 v5, v1, 1, v5          ; 2w + (l>>5)
    v_bfe_u32 v7, v2, 1, 4
    v_xor_b32 v7, v7, v5
    v_and_b32 v8, 1, v2
    v_lshlrev_b32 v{VW2}, 11, v5
    v_lshl_add_u32 v{VW2}, v7, 5, v{VW2}
    v_lshl_add_u32 v{VW2}, v8, 4, v{VW2}
    s_lshl_b32 s22, s16, 17               ; fb*64*2048
    s_lshl_b32 s21, s17, 9                ; q*512
    s_add_u32 s22, s22, s21
    s_mov_b32 s24, s10
    s_mov_b32 s25, s11
    s_cmp_lg_u32 s19, 0
    s_cselect_b32 s26, 0, 7340032
    s_mov_b32 s27, 0x20000
    s_mov_b32 s32, s52
    s_mov_b32 s33, s53
    s_mov_b32 s34, {WS_SIZE}
    s_mov_b32 s35, 0x20000
    s_mov_b32 s56, 0xff00ff00
    s_mov_b32 s57, 0xff00ff00
    v_mov_b32 v{VM1}, {M1}
    v_mov_b32 v{VM2}, {M2}
    v_bfe_u32 v5, v2, 2, 2                ; r
    v_and_b32 v6, 3, v2                   ; cq
    v_and_b32 v7, 1, v3
    v_lshl_add_u32 v7, v7, 2, v5          ; f
    v_lshl_add_u32 v8, v3, 3, v5          ; 8slab + r
    v_lshlrev_b32 v8, 8, v8
    v_lshl_add_u32 v8, v6, 3, v8
    v_add_u32 v8, s39, v8
    v_xor_b32 v9, v1, v7
    v_lshl_add_u32 v{VA0}, v9, 5, v8
    v_xor_b32 v{VA1}, 0x80, v{VA0}
    v_lshlrev_b32 v10, 4, v4              ; b*16
    v_lshl_add_u32 v{VX}, v3, 7, v10
    s_lshr_b32 s20, s39, 4
    s_add_u32 s20, s20, {L_X}
    v_add_u32 v{VX}, s20, v{VX}
    v_lshrrev_b32 v8, 1, v3
    v_lshl_add_u32 v8, v8, 4, v7
    v_lshlrev_b32 v8, 9, v8
    v_lshl_add_u32 v8, v6, 3, v8
    v_add_u32 v8, {L_W2}, v8
    v_lshlrev_b32 v9, 2, v1
    v_xor_b32 v9, v9, v7
    v_lshl_add_u32 v{VB}, v9, 5, v8
    v_xor_b32 v{VB+1}, 32, v{VB}
    v_xor_b32 v{VB+2}, 64, v{VB}
    v_xor_b32 v{VB+3}, 0x60, v{VB}
    s_lshl_b32 s20, s16, 15
    v_lshlrev_b32 v11, 4, v2              ; l*16
    v_lshl_add_u32 v{VG}, v1, 13, v11
    v_add_u32 v{VG}, s20, v{VG}
    s_lshl_b32 s71, s17, 10
    s_lshl_b32 s20, s18, 12
    s_add_u32 s20, s20, 0xfff
''')
    for i in range(7):
        a(f'    s_add_u32 s{64+i}, s{71 if i == 0 else 63+i}, 1024\n    s_and_b32 s{64+i}, s{64+i}, s20')
    a(f'''
    ; h image [kstep][slab][b][8 bf16]: read addr L_H + slab*128 + b*16 (+512 kstep 1)
    ; write addr L_H + w*256 + (mh&1)*128 + b*16 + (mh>>1)*8 + bit3*4
    v_add_u32 v8, {L_H}, v10
    v_lshl_add_u32 v{VHR}, v3, 7, v8
    v_lshl_add_u32 v8, v1, 8, v8
    v_and_b32 v9, 1, v3
    v_lshl_add_u32 v8, v9, 7, v8
    v_lshrrev_b32 v9, 1, v3
    v_lshl_add_u32 v8, v9, 3, v8
    v_bfe_u32 v9, v2, 3, 1                ; bit3
    v_lshl_add_u32 v{VHW}, v9, 2, v8
    ; P2 store addr: rho = (4q+w)*16 + (c + 2*bit3)*4 + mh ; P2_OFF + rho*7168 + fb*128 + b*16
    v_lshl_add_u32 v8, v1, 4, v3
    v_lshl_add_u32 v8, v9, 3, v8
    s_lshl_b32 s20, s17, 6
    v_add_u32 v8, s20, v8
    v_mul_u32_u24 v8, {RS}, v8
    s_add_u32 s20, s23, {P2_OFF}
''' + ('''
    s_lshl_b32 s45, s45, 3
    s_lshl_b64 s[46:47], 0xff, s45        ; lanes of own (assumed) xcd in a reducer load
''' if sent else '') + f'''
    v_add3_u32 v{VP2}, v8, v10, s20
    v_add_u32 v{VP2+1}, {4*RS}, v{VP2}
    ; reducer: read addr, out addr (col = 4*rho + r, r = l>>4)
''' + ('''
    s_and_b32 s13, s2, 7
    s_lshl_b32 s13, s13, 5
    s_lshr_b32 s12, s2, 3
    s_add_u32 s13, s13, s12               ; rho: one xcd owns whole output lines
''' if rmap else '    s_mov_b32 s13, s2\n') + f'''
    s_mul_i32 s12, s13, {RS}
    s_add_u32 s12, s12, {P2_OFF + 3072}
    v_add_u32 v{VRD}, s12, v11
    s_lshl_b32 s12, s13, 2
    v_add_u32 v{VOUT}, s12, v3
    v_lshl_add_u32 v{VOUT}, v4, 10, v{VOUT}
    v_lshlrev_b32 v{VOUT}, 1, v{VOUT}
''')
    for i in range(8):
        a(f'    v_mov_b32 v{AG+i}, 0')
    if n1 < 16:
        a(f'''
    s_cmp_eq_u32 s18, 1
    s_cbranch_scc1 L_i13d
    s_mov_b32 s20, {15-n1}
L_i13b:
    global_load_lds_dwordx4 v[126:127], off {nt}
    v_lshl_add_u64 v[126:127], v[126:127], 0, s[42:43]
    s_addk_i32 m0, 0x1000
    s_sub_u32 s20, s20, 1
    s_cbranch_scc0 L_i13b
L_i13d:
''')
    npt = 0
    if ps1 is not None:
        a(f'    buffer_store_dwordx4 v[{AG}:{AG+3}], v{VG}, s[32:35], s71 offen {ps1}')
        npt += 1
    if ps2 is not None:
        a(f'    global_store_dwordx4 v{VP2}, v[{AG}:{AG+3}], s[52:53] {ps2}')
        a(f'    global_store_dwordx4 v{VP2+1}, v[{AG}:{AG+3}], s[52:53] {ps2}')
        npt += 2
    if pt is not None:
        a(f'    buffer_load_dwordx4 v[{A2}:{A2+3}], v{VG}, s[32:35], s71 offen {pt}')
        npt += 1
    if helpers:
        a('    s_cmp_lg_u32 s19, 0\n    s_cbranch_scc1 L_help')
    a(f'''
    s_mov_b32 s21, 0
    s_lshl_b32 s44, s18, 1
L_pl:
    s_cmp_lt_u32 s21, s44
    s_cbranch_scc1 L_iss
    s_waitcnt vmcnt({12+npt})
''')
    if g1 < 4:
        a(f'''
    s_cmp_lt_u32 s21, 2
    s_cbranch_scc1 L_pl2
    s_waitcnt vmcnt({8+g1+npt})
L_pl2:
''')
    a('    s_barrier')
    def trreads(dst, off):
        a(f'''
    ds_read_b64_tr_b16 v[{dst}:{dst+1}], v{VA0} offset:{off}
    ds_read_b64_tr_b16 v[{dst+2}:{dst+3}], v{VA0} offset:{off+1024}
    ds_read_b64_tr_b16 v[{dst+4}:{dst+5}], v{VA1} offset:{off}
    ds_read_b64_tr_b16 v[{dst+6}:{dst+7}], v{VA1} offset:{off+1024}
''')
    def mf(acc, f, x):
        a(f'    v_mfma_f32_16x16x32_bf16 v[{acc}:{acc+3}], v[{f}:{f+3}], v[{x}:{x+3}], v[{acc}:{acc+3}]')
    X0 = FB + 16; X1 = FB + 20
    a(f'    ds_read_b128 v[{X0}:{X0+3}], v{VX}')
    trreads(FB, 0)
    a(f'    ds_read_b128 v[{X1}:{X1+3}], v{VX} offset:512')
    trreads(FB+8, 8192)
    a(f'''
    v_add_u32 v{VA0}, 16384, v{VA0}
    v_add_u32 v{VA1}, 16384, v{VA1}
    v_add_u32 v{VX}, 1024, v{VX}
    s_cmp_eq_u32 s21, 2
    s_waitcnt lgkmcnt(5)
''')
    mf(AG, FB, X0); mf(AU, FB+4, X0)
    a('    s_waitcnt lgkmcnt(0)')
    mf(AG, FB+8, X1); mf(AU, FB+12, X1)
    a(f'''
    s_cbranch_scc1 L_pdone
L_iss:
''' + ('    s_mov_b32 s20, 3\n' if g1 == 4 else f'    s_cmp_eq_u32 s21, 0\n    s_cselect_b32 s20, 3, {g1-1}\n') + f'''
    s_add_u32 s21, s21, 1
''' + ('    s_cmp_lt_i32 s20, 0\n    s_cbranch_scc1 L_pl\n' if g1 == 0 else '') + f'''
L_i2:
    buffer_load_dwordx4 v{VW2}, s[24:27], s22 offen {nt} lds
    s_add_u32 s22, s22, 16384
    s_addk_i32 m0, 0x1000
    s_sub_u32 s20, s20, 1
    s_cbranch_scc0 L_i2
    s_branch L_pl
L_pdone:
''')
    stamp(9)
    a(f'''
    ds_read_b128 v[{T1}:{T1+3}], v{VT}
    ds_read_b128 v[{T2}:{T2+3}], v{VT} offset:16
    ds_read_b128 v[{X0}:{X0+3}], v{VX}
    ds_read_b128 v[{X1}:{X1+3}], v{VX} offset:512
    s_waitcnt vmcnt({6+g1+npt})
    s_barrier
''')
    trreads(FB, 0)
    a('    s_waitcnt lgkmcnt(0)')
    mf(AG, FB, X0); mf(AU, FB+4, X0)
    a(f'''
    s_waitcnt vmcnt({4+g1})
    s_barrier
''')
    stamp(2)
    trreads(FB+8, 8192)
    a('    s_waitcnt lgkmcnt(2)')
    mf(AG, FB+8, X1)
    a('    s_waitcnt lgkmcnt(0)')
    mf(AU, FB+12, X1)
    a('    s_cmp_eq_u32 s18, 1\n    s_nop 6')
    for r in range(4):
        a(f'    v_cndmask_b32 v{8+r}, v{AG+r}, v{AU+r}, s[56:57]')
    for r in range(4):
        a(f'    v_add_u32 v{124+r}, {(M1+1)//2}, v{8+r}')
    for r in range(4):
        a(f'    v_bfi_b32 v{124+r}, v{VM1}, v{T1+r}, v{124+r}')
    a(f'    buffer_store_dwordx4 v[124:127], v{VG}, s[32:35], s71 offen {"sc1" if p1sc else ""}')
    if clean:
        a(f'    v_mov_b32 v27, v{VG}')
    stamp(3)
    def gather(lo, hi, fl=None):
        for i in range(lo, hi):
            a(f'    buffer_load_dwordx4 v[{G+4*i}:{G+4*i+3}], v{VG}, s[32:35], s{64+i} offen {fl or gld}')
    def h2():
        for _ in range(4 - g1):
            a(f'''
    buffer_load_dwordx4 v{VW2}, s[24:27], s22 offen {nt} lds
    s_add_u32 s22, s22, 16384
    s_addk_i32 m0, 0x1000
    s_cmp_eq_u32 s18, 1
''')
    h2()
    if gafter:
        a('    s_waitcnt vmcnt(0)')
    if gdelay:
        a(f'    s_sleep {gdelay}')
    for k in range(stag + 1):
        if k and gland and k == stag:
            a(f'    s_cbranch_scc0 L_gw\n    s_waitcnt vmcnt({7*k})\n    s_branch L_gw2\nL_gw:\n    s_waitcnt vmcnt({3*k})\nL_gw2:')
        elif k:
            a(f'    s_sleep {stagsl}')
        a(f'    s_cbranch_scc0 L_g{k}')
        gather(3, 7)
        a(f'L_g{k}:')
        gather(0, 3)
    if not gland:
        a(f'    s_waitcnt vmcnt({3*(stag+1)+(1 if g1 == 4 else 0)})')
    a('    s_barrier')
    stamp(4)
    for s in range(2):
        for c in range(4):
            for hh in range(2):
                d = F2 + 16*s + 4*c + 2*hh
                a(f'    ds_read_b64_tr_b16 v[{d}:{d+1}], v{VB+c} offset:{16384*s + 4096*hh}')
    a('L_poll1:')
    a('    s_waitcnt vmcnt(0)')
    for i in range(3):
        for k in range(4):
            a(f'    v_xor_b32 v{G+4*i+k}, v{T1+k}, v{G+4*i+k}')
    orchain(a, 5, range(G, G+12))
    a(f'''
    v_pk_add_f32 v[{AG}:{AG+1}], v[8:9], v[{G}:{G+1}]
    v_pk_add_f32 v[{AG+2}:{AG+3}], v[10:11], v[{G+2}:{G+3}]
    v_pk_add_f32 v[{AU}:{AU+1}], v[{G+4}:{G+5}], v[{G+8}:{G+9}]
    v_pk_add_f32 v[{AU+2}:{AU+3}], v[{G+6}:{G+7}], v[{G+10}:{G+11}]
    s_cbranch_scc1 L_more
L_hcalc:
    v_and_b32 v5, v{VM1}, v5
    v_pk_add_f32 v[{AG}:{AG+1}], v[{AG}:{AG+1}], v[{AU}:{AU+1}]
    v_pk_add_f32 v[{AG+2}:{AG+3}], v[{AG+2}:{AG+3}], v[{AU+2}:{AU+3}]
    v_cmp_ne_u32 vcc, 0, v5
    v_cvt_pk_bf16_f32 v6, v{AG}, v{AG+1}
    v_cvt_pk_bf16_f32 v7, v{AG+2}, v{AG+3}
    v_cvt_pk_bf16_f32 v5, v{AG+2}, v{AG+3}
    s_cbranch_vccnz L_retry1
''')
    stamp(10 - 0) if False else None
    a(f'''
    v_mov_b32_dpp v7, v6 row_ror:8 row_mask:0xf bank_mask:0x3
    v_mov_b32_dpp v6, v5 row_ror:8 row_mask:0xf bank_mask:0xc
    v_lshlrev_b32 v{AU}, 16, v7
    v_and_b32 v{AU+1}, 0xffff0000, v7
    v_lshlrev_b32 v{AG}, 16, v6
    v_and_b32 v{AG+1}, 0xffff0000, v6
    v_mul_f32 v{AG+2}, 0xbfb8aa3b, v{AG}
    v_mul_f32 v{AG+3}, 0xbfb8aa3b, v{AG+1}
    v_exp_f32 v{AG+2}, v{AG+2}
    v_exp_f32 v{AG+3}, v{AG+3}
    s_nop 0
    v_add_f32 v{AG+2}, 1.0, v{AG+2}
    v_add_f32 v{AG+3}, 1.0, v{AG+3}
    v_rcp_f32 v{AG+2}, v{AG+2}
    v_rcp_f32 v{AG+3}, v{AG+3}
    s_nop 0
    v_mul_f32 v{AG+2}, v{AG}, v{AG+2}
    v_mul_f32 v{AG+3}, v{AG+1}, v{AG+3}
    v_cvt_pk_bf16_f32 v6, v{AG+2}, v{AG+3}
    v_lshlrev_b32 v{AG}, 16, v6
    v_and_b32 v{AG+1}, 0xffff0000, v6
    v_mul_f32 v{AG}, v{AG}, v{AU}
    v_mul_f32 v{AG+1}, v{AG+1}, v{AU+1}
    v_cvt_pk_bf16_f32 v6, v{AG}, v{AG+1}
    ds_write_b32 v{VHW}, v6
    s_cmp_lg_u32 s19, 0
    s_waitcnt lgkmcnt(0)
    s_barrier
''')
    stamp(5)
    a(f'''
    ds_read_b128 v[{AG}:{AG+3}], v{VHR}
    ds_read_b128 v[{AU}:{AU+3}], v{VHR} offset:512
    s_cbranch_scc1 L_extra
    s_waitcnt lgkmcnt(1)
''')
    for s in range(2):
        if s == 1:
            a('    s_waitcnt lgkmcnt(0)')
        hb = AG if s == 0 else AU
        for c in (0, 2, 1, 3):
            cin = '0' if s == 0 else f'v[{A2+4*c}:{A2+4*c+3}]'
            f = F2 + s*16 + 4*c
            a(f'    v_mfma_f32_16x16x32_bf16 v[{A2+4*c}:{A2+4*c+3}], v[{f}:{f+3}], v[{hb}:{hb+3}], {cin}')
    a('    s_cmp_lg_u32 s54, 0\n    s_nop 4')
    for c in range(2):
        for r in range(4):
            a(f'    v_cndmask_b32 v{A2+4*c+r}, v{A2+4*c+r}, v{A2+8+4*c+r}, s[56:57]')
        for r in range(4):
            a(f'    v_bfi_b32 v{A2+4*c+r}, v{VM2}, v{T2+r}, v{A2+4*c+r}')
        a(f'    global_store_dwordx4 v{VP2+c}, v[{A2+4*c}:{A2+4*c+3}], s[52:53] sc1')
    stamp(6)
    CL = '    buffer_store_dwordx4 v[124:127], v27, s[32:35], s71 offen sc1'
    if clean == 1:
        a(CL)
    SL = f'    global_load_dwordx4 v[{G}:{G+3}], v{VRD}, s[52:53] offset:{1024*sj-3072} sc1'
    if sent == 1:
        a('    s_cbranch_scc1 L_wend')
        a(SL)
    a('    s_waitcnt vmcnt(0)')
    if sent != 1:
        a('    s_cbranch_scc1 L_end')
    a('    s_barrier')
    if sent == 2:
        a('L_sent0:')
        a(SL)
        a('    s_waitcnt vmcnt(0)')
    if sent:
        a(f'''
L_sent:
    v_xor_b32 v{G}, v{T2}, v{G}
    v_xor_b32 v{G+1}, v{T2+1}, v{G+1}
    v_and_or_b32 v5, v{G}, v{VM2}, 0
    v_and_or_b32 v5, v{G+1}, v{VM2}, v5
    v_cmp_ne_u32 vcc, 0, v5
    s_andn2_b64 vcc, vcc, s[46:47]
    s_cbranch_scc1 L_sretry
''')
    a('L_poll2:')
    for i in range(7):
        a(f'    global_load_dwordx4 v[{G+4*i}:{G+4*i+3}], v{VRD}, s[52:53] offset:{1024*i-3072} sc1')
    for i in range(7):
        a(f'    s_waitcnt vmcnt({6-i})')
        for k in range(4):
            a(f'    v_xor_b32 v{G+4*i+k}, v{T2+k}, v{G+4*i+k}')
        if i == 0:
            a(f'    v_or3_b32 v5, v{G}, v{G+1}, v{G+2}')
            a(f'    v_or_b32 v5, v5, v{G+3}')
        else:
            a(f'    v_or3_b32 v5, v5, v{G+4*i}, v{G+4*i+1}')
            a(f'    v_or3_b32 v5, v5, v{G+4*i+2}, v{G+4*i+3}')
            src = 8 if i > 1 else G
            a(f'    v_pk_add_f32 v[8:9], v[{src}:{src+1}], v[{G+4*i}:{G+4*i+1}]')
            a(f'    v_pk_add_f32 v[10:11], v[{src+2}:{src+3}], v[{G+4*i+2}:{G+4*i+3}]')
    a(f'''
    v_and_b32 v5, v{VM2}, v5
    v_cmp_ne_u32 vcc, 0, v5
    v_permlane32_swap_b32 v8, v10
    v_permlane32_swap_b32 v9, v11
    s_cbranch_vccnz L_retry2
''')
    stamp(7)
    a(f'''
    v_add_f32 v8, v8, v10
    v_add_f32 v9, v9, v11
    s_nop 1
    v_permlane16_swap_b32 v8, v9
    s_nop 0
    v_add_f32 v8, v8, v9
    s_nop 1
    v_add_f32_dpp v8, v8, v8 row_ror:8 row_mask:0xf bank_mask:0xf
    s_mov_b64 exec, s[56:57]
    v_cvt_pk_bf16_f32 v8, v8, v8
    global_store_short v{VOUT}, v8, s[48:49] {outsc}
''')
    if stamps:
        a('    s_waitcnt vmcnt(0)')
        stamp(8)
        a('    s_branch L_dump')
    a('L_end:')
    if stamps:
        stamp(7)
        a('''
    s_barrier
L_dump0:
    s_sleep 60
L_dump:
    s_mov_b64 exec, -1
    s_waitcnt lgkmcnt(0)
    s_add_u32 s92, s60, s72
    s_addc_u32 s93, 0, s73
    s_mov_b64 s[94:95], s[72:73]
''')
        for i in range(2*NST):
            a(f'    v_mov_b32 v{64+i}, s{72+i}')
        a(f'''
    s_lshl_b32 s12, s54, 8
    s_add_u32 s12, s12, s2
    s_mul_i32 s12, s12, {NST*8}
    s_add_u32 s12, s12, {STAMP_OFF}
    v_mov_b32 v5, s12
    s_mov_b64 exec, 1
''')
        for i in range(NST//2):
            a(f'    global_store_dwordx4 v5, v[{64+4*i}:{67+4*i}], s[52:53] offset:{16*i}')
    a(f'''
L_exit:
    s_endpgm
L_extra:
''' + (f'    s_sleep 6\n{CL}\n' if clean else '') + f'''
    s_cmp_lg_u32 s54, 0
    s_cbranch_scc1 {'L_dump0' if stamps else 'L_exit'}
    s_sleep {xsleep}                            ; polling back-off: no own stores to wait for
    s_branch {'L_sretry' if sent else 'L_poll2'}
''' + (f'''
L_wend:
    s_waitcnt vmcnt(0)
    s_branch L_end
L_sretry:
{SL}
    s_add_u32 s60, s60, 1
    s_cmp_lt_u32 s60, 0x400000
    s_waitcnt vmcnt(0)
    s_cbranch_scc1 L_sent
    s_endpgm
''' if sent else '') + f'''
L_retry2:
    s_add_u32 s60, s60, 1
    s_cmp_lt_u32 s60, 0x400000
    s_cbranch_scc1 L_poll2
    s_endpgm
L_more:
''')
    for i in range(3, 7):
        for k in range(4):
            a(f'    v_xor_b32 v{G+4*i+k}, v{T1+k}, v{G+4*i+k}')
    orchain(a, 5, range(G+12, G+28), first=False)
    for i in range(3, 7):
        acc = AG if i & 1 else AU
        a(f'    v_pk_add_f32 v[{acc}:{acc+1}], v[{acc}:{acc+1}], v[{G+4*i}:{G+4*i+1}]')
        a(f'    v_pk_add_f32 v[{acc+2}:{acc+3}], v[{acc+2}:{acc+3}], v[{G+4*i+2}:{G+4*i+3}]')
    a('    s_branch L_hcalc')
    if helpers:
        a(f'''
L_help:
    s_cmp_lg_u32 s54, 0
    s_cbranch_scc1 L_exit
    s_barrier
    ds_read_b128 v[{T1}:{T1+3}], v{VT}
    ds_read_b128 v[{T2}:{T2+3}], v{VT} offset:16
L_help1:
    s_sleep 4
    buffer_load_dwordx4 v[{G}:{G+3}], v{VG}, s[32:35], s64 offen sc1
    s_add_u32 s60, s60, 1
    s_cmp_gt_u32 s60, 200
    s_waitcnt vmcnt(0) lgkmcnt(0)
    s_cbranch_scc1 L_poll2
    v_xor_b32 v5, v{T1}, v{G}
    v_and_b32 v5, v{VM1}, v5
    v_cmp_ne_u32 vcc, 0, v5
    s_cbranch_vccnz L_help1
    s_sleep 30
    s_branch L_poll2
''')
    a(f'''
L_aux:
    s_setprio 3
    v_mov_b32 v8, 0
    s_getreg_b32 s20, hwreg(HW_REG_XCC_ID)
    s_waitcnt lgkmcnt(0)
''' + (f'''
    s_and_b32 s21, s2, 127
    s_lshl_b32 s21, s21, 7
    v_mov_b32 v9, s21
    global_load_dword v10, v9, s[48:49] {otouch}
''' if otouch is not None else '') + f'''
    s_sleep {auxsleep}                            ; polling back-off before reading the nonce
    global_load_dwordx2 v[28:29], v8, s[50:51] sc1
    s_sleep {aux2}
    global_load_dwordx2 v[30:31], v8, s[50:51] sc1
    s_and_b32 s20, s20, {0 if p1sc else 7}
    s_lshl_b32 s20, s20, 7
    s_cmp_eq_u32 s18, 1
    s_cbranch_scc1 L_aux0
    s_barrier
    s_barrier
L_aux0:
    s_waitcnt vmcnt(1)
    v_cmp_lt_i32 vcc, -1, v29
    s_cbranch_vccz L_aux2
L_aux1:
    s_waitcnt vmcnt(0)
    v_mov_b32 v28, v30
    v_mov_b32 v29, v31
    v_cmp_lt_i32 vcc, -1, v31             ; nonce not yet valid
    s_cbranch_vccnz L_nretry
L_aux2:
    v_and_b32 v{T1}, {M1}, v28
    v_bfe_u32 v{T1+1}, v28, 10, 10
    v_bfe_u32 v{T1+2}, v28, 20, 10
    v_alignbit_b32 v5, v29, v28, 30
    v_and_b32 v5, {M1}, v5
    v_xor_b32 v{T1+3}, s20, v5
    v_and_b32 v{T2}, {M2}, v28
    v_bfe_u32 v{T2+1}, v28, 12, 12
    v_alignbit_b32 v5, v29, v28, 24
    v_and_b32 v{T2+2}, {M2}, v5
    v_bfe_u32 v{T2+3}, v29, 4, 12
    ds_write_b128 v{VT}, v[{T1}:{T1+3}]
    ds_write_b128 v{VT}, v[{T2}:{T2+3}] offset:16
    s_waitcnt lgkmcnt(0)
''')
    stamp(3)
    if stamps:
        a('    s_barrier\n    s_barrier\n    s_barrier\n    s_barrier\n    s_barrier\n    s_cmp_lg_u32 s19, 0\n    s_cbranch_scc1 L_dump0\n    s_branch L_end')
    a(f'''
    s_endpgm
''' + ('' if hotretry else 'L_codeend:\n') + f'''
L_nretry:
    global_load_dwordx2 v[30:31], v8, s[50:51] sc1
    s_add_u32 s60, s60, 1
    s_cmp_lt_u32 s60, 0x400000
    s_cbranch_scc1 L_aux1
    s_endpgm
L_retry1:
    s_cmp_lt_u32 s60, {0x7fffffff if p1sc else KF}
    s_cbranch_scc1 L_r1a
    s_getreg_b32 s20, hwreg(HW_REG_XCC_ID)
    s_and_b32 s20, s20, 7
    s_lshl_b32 s20, s20, 7
    v_xor_b32 v{T1+3}, s20, v{T1+3}       ; toggle tag between plain (xcc-mixed) and safe form
    v_xor_b32 v{VG}, {P1_SAFE}, v{VG}
    s_cmp_eq_u32 s60, {KF}
    s_cbranch_scc0 L_r1a
''')
    for r in range(4):
        a(f'    v_bfi_b32 v{AG+r}, v{VM1}, v{T1+r}, v{124+r}')
    a(f'''
    buffer_store_dwordx4 v[{AG}:{AG+3}], v{VG}, s[32:35], s71 offen sc1
    s_waitcnt vmcnt(0)
L_r1a:
    s_add_u32 s60, s60, 1
    s_cmp_ge_u32 s60, 0x400000
    s_cbranch_scc1 L_exit
    s_cmp_eq_u32 s18, 1
    s_cbranch_scc0 L_r1b
''')
    gather(3, 7, 'sc1')
    a('L_r1b:')
    gather(0, 3, 'sc1')
    a('    s_branch L_poll1')
    if hotretry:
        a('L_codeend:')
    a(RODATA)
    a(kdesc(KNAME, 128, 100))
    open(fname, 'w').write(a.text())
if __name__ == '__main__':
    B = dict(gland=True, KF=10, rmap=True, xsleep=26)
    V = dict(
      r=dict(),
      gn=dict(gld='nt'),
      sl=dict(gland=False),
      g2=dict(stag=2),
      h2=dict(g1=2, gland=False),
      h0=dict(g1=0, gland=False),
      os=dict(outsc='sc1'),
      bal=dict(bal=True),
      x22=dict(xsleep=24),
      fa=dict(codepf=0x100),
      q10=dict(n1=10),
    )
    for k, v in V.items():
        gen(f'v7_{k}.s', **{**B, **v})
        gen(f'v7_{k}_st.s', stamps=True, **{**B, **v})
    HDR = '''; SwiGLU decode (B=8, D=1024, F=3584), one fused launch.  out = (silu(x@w1) * (x@w3)) @ w2
'''
    t = open('v7_r.s').read().replace('; generated\n', HDR)
    import re
    t = re.sub(r'\n\n+', '\n', t)
    open('final.s', 'w').write(t)
```

```python
import sys
from genlib import *
P1_SAFE = 4 << 20
P2_OFF = 2 << 20
WS_SIZE = 8 << 20
STAMP_OFF = 128 << 20
M1 = 0x3ff
M2 = 0xfff
L_W2 = 65536
L_X = 98304
L_H = 102400
L_T = 103424
LDS_SIZE = 103488

def orchain(a, dst, regs, first=True):
    regs = list(regs)
    i = 0
    if first:
        a(f'    v_or3_b32 v{dst}, v{regs[0]}, v{regs[1]}, v{regs[2]}')
        i = 3
    while i + 1 < len(regs):
        a(f'    v_or3_b32 v{dst}, v{dst}, v{regs[i]}, v{regs[i+1]}')
        i += 2
    if i < len(regs):
        a(f'    v_or_b32 v{dst}, v{dst}, v{regs[i]}')

def gen(fname, nt='nt', stamps=False, codepf=0x18, auxsleep=10, aux2=16, stag=1, stagsl=8, xsleep=14, KF=24, pt=None, gdelay=0, p1sc=False, xmap=False, gafter=False, gld='sc1', g1=4, h2first=True, ps1=None, ps2=None, early=None, outsc='', clean=0, sent=0, sj=0, otouch=None, gland=False, hotretry=True, rmap=False, RS=7168, n1=16, bal=False, xpt=None, xptpos=0, helpers=False, hp2=None, ldfirst=False):
    a = Asm()
    a(header([(KNAME, 256, 320, LDS_SIZE)]))
    a(kstart(KNAME))
    NST = 12
    def stamp(i):
        if stamps:
            a(f'    s_memrealtime s[{72+2*i}:{73+2*i}]')
    T1 = 12; T2 = 16; VM1 = 20; VM2 = 21; VG = 22; VRD = 23; VW2 = 24; VT = 25; VOUT = 26
    VA0 = 28; VA1 = 29; VX = 30; VHW = 31
    FB = 32
    G = 32
    AG = 60; AU = 64
    VB = 68
    VHR = 72; VP2 = 73
    F2 = 76
    A2 = 108
    if stamps:
        for i in range(1, NST):
            a(f'    s_mov_b64 s[{72+2*i}:{73+2*i}], 0')
    stamp(0)
    if ldfirst:
        a('''
    s_load_dwordx8 s[4:11], s[0:1], 0     ; x, w1, w3, w2
    s_load_dwordx4 s[48:51], s[0:1], 32
    s_load_dwordx2 s[52:53], s[0:1], 48   ; ws
''')
    if codepf:
        a(f'''
    s_and_b32 s3, s2, {codepf}
    s_cbranch_scc1 L_nopf
    s_getpc_b64 s[20:21]
L_pc:
    v_lshlrev_b32 v5, 4, v0
    v_min_u32 v5, L_codeend-L_pc-4, v5
    global_load_dword v27, v5, s[20:21]
L_nopf:
''')
    a(f'''
    s_cmp_ge_u32 s2, 256
    s_cbranch_scc1 L_exit
''' + ('' if ldfirst else '''
    s_load_dwordx8 s[4:11], s[0:1], 0     ; x, w1, w3, w2
    s_load_dwordx4 s[48:51], s[0:1], 32   ; out, dbg
    s_load_dwordx2 s[52:53], s[0:1], 48   ; ws
''') + f'''
    s_memrealtime s[36:37]
    v_lshrrev_b32 v1, 6, v0               ; wave
    v_and_b32 v2, 63, v0                  ; lane
    v_readfirstlane_b32 s54, v1           ; wave id
    v_lshrrev_b32 v3, 4, v2               ; slab / mh
    v_and_b32 v4, 7, v2                   ; b
    v_mov_b32 v{VT}, {L_T}
    s_mov_b32 s60, 0
''')
    if bal:
        a('''
    s_and_b32 s12, s2, 7
    s_lshr_b32 s13, s2, 3                 ; idx
    s_lshr_b32 s15, s13, 2
    s_lshl_b32 s14, s12, 3                ; 8x
    s_lshl_b32 s16, s12, 2
    s_add_u32 s16, s16, 16                ; 32 + 4(x-4)
    s_cmp_lt_u32 s12, 4
    s_cselect_b32 s14, s14, s16
    s_add_u32 s14, s14, s15
    s_mul_i32 s15, s14, 37
    s_lshr_b32 s15, s15, 8                ; n/7
    s_add_u32 s16, s14, s15               ; 8(n/7) + n%7
    s_and_b32 s17, s16, 7
    s_cmp_ge_u32 s17, 3
    s_addc_u32 s16, s16, 0
    s_lshl_b32 s14, s12, 4
    s_and_b32 s15, s13, 8
    s_add_u32 s14, s14, s15
    s_sub_u32 s14, s14, 61                ; 8s+3, s = 2(x-4) + ((idx>>3)&1)
    s_min_u32 s14, s14, 55
    s_and_b32 s15, s2, 0x84
    s_cmp_eq_u32 s15, 0x84
    s_cselect_b32 s16, s14, s16
    s_cselect_b32 s18, 1, 0
    s_cselect_b32 s17, 7, 3
    s_and_b32 s17, s17, s13               ; q
    s_and_b32 s19, s17, 4
''')
    elif not xmap:
        a('''
    s_and_b32 s12, s2, 7
    s_lshr_b32 s13, s2, 3                 ; idx
    s_add_u32 s14, s12, 3
    s_and_b32 s14, s14, 7
    s_cmp_eq_u32 s14, 7
    s_cselect_b32 s14, 3, s14
    s_lshr_b32 s15, s13, 2                ; j (7 -> extra)
    s_and_b32 s17, s13, 3                 ; q
    s_cmp_eq_u32 s15, 7
    s_cselect_b32 s15, s14, s15
    s_cselect_b32 s19, 4, 0
    s_add_u32 s17, s17, s19
    s_mul_i32 s12, s12, 7
    s_add_u32 s16, s12, s15               ; fb
    s_cmp_eq_u32 s15, s14
    s_cselect_b32 s18, 1, 0
''')
    else:
        a('''
    s_lshr_b32 s16, s2, 2                 ; unit
    s_and_b32 s17, s2, 3                  ; q
    s_sub_u32 s12, s16, 56
    s_lshl_b32 s12, s12, 3
    s_add_u32 s12, s12, 3
    s_cmp_eq_u32 s16, 63
    s_cselect_b32 s12, 31, s12
    s_cmp_ge_u32 s16, 56
    s_cselect_b32 s16, s12, s16           ; fb
    s_cselect_b32 s19, 4, 0
    s_add_u32 s17, s17, s19
    s_and_b32 s12, s16, 7
    s_cmp_eq_u32 s12, 3
    s_cselect_b32 s18, 1, 0
    s_cmp_eq_u32 s16, 31
    s_cselect_b32 s18, 1, s18
''')
    a(f'''
''' + ('''
    s_mov_b32 s18, 0
    s_cmp_lg_u32 s19, 0
    s_cselect_b32 s16, s12, s16
    s_cselect_b32 s18, 1, 0
''' if helpers else '') + f'''
    s_cmp_eq_u32 s54, 4
    s_cbranch_scc1 L_aux
''' + ('    s_mov_b32 s18, 0\n' if helpers else '') + f'''
    ; w13 source: row = r0 + 4w + (l>>4) ; piece = ((l&15)>>1) ^ ((l>>4) | (w>>1)<<2)
    s_sub_u32 s20, 8, s18
    s_lshl_b32 s21, s17, s20              ; r0
    v_lshl_add_u32 v5, v1, 2, v3
    v_add_u32 v5, s21, v5                 ; row
    v_mul_u32_u24 v6, 7168, v5
    v_bfe_u32 v7, v2, 1, 3                ; pos
    s_lshr_b32 s22, s54, 1
    s_lshl_b32 s22, s22, 2
    v_xor_b32 v7, v7, v3
    v_xor_b32 v7, s22, v7                 ; piece
    v_cmp_lt_u32 vcc, 3, v7               ; mat
    v_and_b32 v7, 3, v7
    v_and_b32 v8, 1, v2
    v_lshl_add_u32 v6, v7, 5, v6
    v_lshl_add_u32 v6, v8, 4, v6
    s_lshl_b32 s23, s16, 7                ; fb*128
    v_add_u32 v6, s23, v6
    ; x source: b*2048 + r0x*2 + (tid>>3)*16
    s_lshl_b32 s20, s18, 7
    s_sub_u32 s21, s21, s20               ; r0x
    s_lshl_b32 s21, s21, 1
    v_lshrrev_b32 v9, 3, v0
    v_lshlrev_b32 v9, 4, v9
    v_lshl_add_u32 v9, v4, 11, v9
    v_add_u32 v9, s21, v9
    s_mov_b64 s[42:43], {16*7168}
    s_lshl_b32 s38, s54, 10               ; w*1024
    s_add_u32 m0, s38, {L_X}
    s_mov_b32 s30, 16384
    s_mov_b32 s31, 0x20000
    s_lshl_b32 s39, s18, 15               ; split: tiles 4..7
    s_cmp_eq_u32 s18, 1
    s_cselect_b32 s20, 7, {n1-1}          ; loop count - 1
''' + (f'''
    s_lshl_b32 s40, s16, 15
    s_lshl_b32 s41, s17, 10
    s_add_u32 s40, s40, s41
    v_lshlrev_b32 v12, 4, v2
    v_lshl_add_u32 v12, v1, 13, v12
    v_add_u32 v12, s40, v12
''' if early is not None else '') + f'''
    s_or_b32 s21, s2, s54
    s_waitcnt lgkmcnt(0)
    s_cbranch_scc1 L_nonw
    s_or_b32 s37, s37, 0x80000000
    v_mov_b32 v10, s36
    v_mov_b32 v11, s37
    v_mov_b32 v8, 0
    s_mov_b64 exec, 1
    global_store_dwordx2 v8, v[10:11], s[50:51] sc1
    s_mov_b64 exec, -1
L_nonw:
''' + (f'''
    s_cmp_eq_u32 s19, 0
    s_cbranch_scc1 L_nxpt
    ; extras pre-touch the hop-1 lines of their (assumed) xcd: e = (q&3)*256 + tid
    s_and_b32 s40, s17, 3
    s_lshl_b32 s40, s40, 3
    v_lshrrev_b32 v12, 5, v0
    v_add_u32 v12, s40, v12               ; u = idx of the owner workgroup
    v_lshrrev_b32 v13, 2, v12             ; j
    v_and_b32 v12, 3, v12                 ; q
    v_cmp_eq_u32 s[40:41], 7, v13
    v_mov_b32 v14, s14
    v_add_u32 v15, 4, v12
    v_cndmask_b32 v13, v13, v14, s[40:41]
    v_cndmask_b32 v12, v12, v15, s[40:41]
    v_add_u32 v13, s12, v13               ; fb
    v_lshlrev_b32 v13, 15, v13
    v_lshl_add_u32 v13, v12, 10, v13
    v_bfe_u32 v12, v0, 3, 2
    v_lshl_add_u32 v13, v12, 13, v13
    v_lshl_add_u32 v13, v4, 7, v13
    global_load_dword v14, v13, s[52:53] {xpt}
''' + ((f'''
    s_and_b32 s40, s2, 7
    s_mul_i32 s40, s40, {32*RS}
    s_and_b32 s41, s17, 3
    s_mul_i32 s41, s41, {8*RS}
    s_add_u32 s40, s40, s41
    s_add_u32 s40, s40, {P2_OFF}
    v_lshlrev_b32 v13, 7, v0
    v_add_u32 v13, s40, v13
    global_load_dword v15, v13, s[52:53] {hp2}
    v_add_u32 v13, {8*RS-32768}, v13
    global_load_dword v16, v13, s[52:53] {hp2}
''' if hp2 is not None else '') + '    s_mov_b32 s17, 3\n    s_branch L_prec\n' if helpers else '') + f'''
L_nxpt:
''' if xpt is not None and xptpos == 0 else '') + f'''
''' + (f'    global_load_dwordx4 v[{A2}:{A2+3}], v12, s[52:53] {early}\n' if early is not None else '') + f'''
    s_mov_b32 s28, s4
    s_mov_b32 s29, s5
    v_mov_b32 v10, s6
    v_mov_b32 v11, s7
    v_mov_b32 v7, s8
    v_mov_b32 v8, s9
    buffer_load_dwordx4 v9, s[28:31], 0 offen lds
    v_cndmask_b32 v10, v10, v7, vcc
    v_cndmask_b32 v11, v11, v8, vcc
    v_add_co_u32 v126, vcc, v10, v6
    s_add_u32 m0, s38, s39
    s_nop 0
    v_addc_co_u32 v127, vcc, 0, v11, vcc
L_i13:
    global_load_lds_dwordx4 v[126:127], off {nt}
    v_lshl_add_u64 v[126:127], v[126:127], 0, s[42:43]
    s_addk_i32 m0, 0x1000
    s_sub_u32 s20, s20, 1
    s_cbranch_scc0 L_i13
''')
    stamp(1)
    a(f'''
L_prec:
    v_lshrrev_b32 v5, 5, v2
    v_lshl_add_u32 v5, v1, 1, v5          ; 2w + (l>>5)
    v_bfe_u32 v7, v2, 1, 4
    v_xor_b32 v7, v7, v5
    v_and_b32 v8, 1, v2
    v_lshlrev_b32 v{VW2}, 11, v5
    v_lshl_add_u32 v{VW2}, v7, 5, v{VW2}
    v_lshl_add_u32 v{VW2}, v8, 4, v{VW2}
    s_lshl_b32 s22, s16, 17               ; fb*64*2048
    s_lshl_b32 s21, s17, 9                ; q*512
    s_add_u32 s22, s22, s21
    s_mov_b32 s24, s10
    s_mov_b32 s25, s11
    s_cmp_lg_u32 s19, 0
    s_cselect_b32 s26, 0, 7340032
    s_mov_b32 s27, 0x20000
    s_mov_b32 s32, s52
    s_mov_b32 s33, s53
    s_mov_b32 s34, {WS_SIZE}
    s_mov_b32 s35, 0x20000
    s_mov_b32 s56, 0xff00ff00
    s_mov_b32 s57, 0xff00ff00
    v_mov_b32 v{VM1}, {M1}
    v_mov_b32 v{VM2}, {M2}
    v_bfe_u32 v5, v2, 2, 2                ; r
    v_and_b32 v6, 3, v2                   ; cq
    v_and_b32 v7, 1, v3
    v_lshl_add_u32 v7, v7, 2, v5          ; f
    v_lshl_add_u32 v8, v3, 3, v5          ; 8slab + r
    v_lshlrev_b32 v8, 8, v8
    v_lshl_add_u32 v8, v6, 3, v8
    v_add_u32 v8, s39, v8
    v_xor_b32 v9, v1, v7
    v_lshl_add_u32 v{VA0}, v9, 5, v8
    v_xor_b32 v{VA1}, 0x80, v{VA0}
    v_lshlrev_b32 v10, 4, v4              ; b*16
    v_lshl_add_u32 v{VX}, v3, 7, v10
    s_lshr_b32 s20, s39, 4
    s_add_u32 s20, s20, {L_X}
    v_add_u32 v{VX}, s20, v{VX}
    v_lshrrev_b32 v8, 1, v3
    v_lshl_add_u32 v8, v8, 4, v7
    v_lshlrev_b32 v8, 9, v8
    v_lshl_add_u32 v8, v6, 3, v8
    v_add_u32 v8, {L_W2}, v8
    v_lshlrev_b32 v9, 2, v1
    v_xor_b32 v9, v9, v7
    v_lshl_add_u32 v{VB}, v9, 5, v8
    v_xor_b32 v{VB+1}, 32, v{VB}
    v_xor_b32 v{VB+2}, 64, v{VB}
    v_xor_b32 v{VB+3}, 0x60, v{VB}
    s_lshl_b32 s20, s16, 15
    v_lshlrev_b32 v11, 4, v2              ; l*16
    v_lshl_add_u32 v{VG}, v1, 13, v11
    v_add_u32 v{VG}, s20, v{VG}
    s_lshl_b32 s71, s17, 10
    s_lshl_b32 s20, s18, 12
    s_add_u32 s20, s20, 0xfff
''')
    for i in range(7):
        a(f'    s_add_u32 s{64+i}, s{71 if i == 0 else 63+i}, 1024\n    s_and_b32 s{64+i}, s{64+i}, s20')
    a(f'''
    ; h image [kstep][slab][b][8 bf16]: read addr L_H + slab*128 + b*16 (+512 kstep 1)
    ; write addr L_H + w*256 + (mh&1)*128 + b*16 + (mh>>1)*8 + bit3*4
    v_add_u32 v8, {L_H}, v10
    v_lshl_add_u32 v{VHR}, v3, 7, v8
    v_lshl_add_u32 v8, v1, 8, v8
    v_and_b32 v9, 1, v3
    v_lshl_add_u32 v8, v9, 7, v8
    v_lshrrev_b32 v9, 1, v3
    v_lshl_add_u32 v8, v9, 3, v8
    v_bfe_u32 v9, v2, 3, 1                ; bit3
    v_lshl_add_u32 v{VHW}, v9, 2, v8
    ; P2 store addr: rho = (4q+w)*16 + (c + 2*bit3)*4 + mh ; P2_OFF + rho*7168 + fb*128 + b*16
    v_lshl_add_u32 v8, v1, 4, v3
    v_lshl_add_u32 v8, v9, 3, v8
    s_lshl_b32 s20, s17, 6
    v_add_u32 v8, s20, v8
    v_mul_u32_u24 v8, {RS}, v8
''' + (f'''
    s_and_b32 s45, s2, 7
    s_lshl_b32 s20, s15, 3
    s_add_u32 s20, s20, s45
    s_lshl_b32 s20, s20, 7
    s_add_u32 s20, s20, {P2_OFF}
''' if sent else f'    s_add_u32 s20, s23, {P2_OFF}\n') + ('''
    s_lshl_b32 s45, s45, 3
    s_lshl_b64 s[46:47], 0xff, s45        ; lanes of own (assumed) xcd in a reducer load
''' if sent else '') + f'''
    v_add3_u32 v{VP2}, v8, v10, s20
    v_add_u32 v{VP2+1}, {4*RS}, v{VP2}
    ; reducer: read addr, out addr (col = 4*rho + r, r = l>>4)
''' + ('''
    s_and_b32 s13, s2, 7
    s_lshl_b32 s13, s13, 5
    s_lshr_b32 s12, s2, 3
    s_add_u32 s13, s13, s12               ; rho: one xcd owns whole output lines
''' if rmap else '    s_mov_b32 s13, s2\n') + f'''
    s_mul_i32 s12, s13, {RS}
    s_add_u32 s12, s12, {P2_OFF + 3072}
    v_add_u32 v{VRD}, s12, v11
    s_lshl_b32 s12, s13, 2
    v_add_u32 v{VOUT}, s12, v3
    v_lshl_add_u32 v{VOUT}, v4, 10, v{VOUT}
    v_lshlrev_b32 v{VOUT}, 1, v{VOUT}
''')
    for i in range(8):
        a(f'    v_mov_b32 v{AG+i}, 0')
    if n1 < 16:
        a(f'''
    s_cmp_eq_u32 s18, 1
    s_cbranch_scc1 L_i13d
    s_mov_b32 s20, {15-n1}
L_i13b:
    global_load_lds_dwordx4 v[126:127], off {nt}
    v_lshl_add_u64 v[126:127], v[126:127], 0, s[42:43]
    s_addk_i32 m0, 0x1000
    s_sub_u32 s20, s20, 1
    s_cbranch_scc0 L_i13b
L_i13d:
''')
    npt = 0
    if ps1 is not None:
        a(f'    buffer_store_dwordx4 v[{AG}:{AG+3}], v{VG}, s[32:35], s71 offen {ps1}')
        npt += 1
    if ps2 is not None:
        a(f'    global_store_dwordx4 v{VP2}, v[{AG}:{AG+3}], s[52:53] {ps2}')
        a(f'    global_store_dwordx4 v{VP2+1}, v[{AG}:{AG+3}], s[52:53] {ps2}')
        npt += 2
    if pt is not None:
        a(f'    buffer_load_dwordx4 v[{A2}:{A2+3}], v{VG}, s[32:35], s71 offen {pt}')
        npt += 1
    if helpers:
        a('    s_cmp_lg_u32 s19, 0\n    s_cbranch_scc1 L_help')
    a(f'''
    s_mov_b32 s21, 0
    s_lshl_b32 s44, s18, 1
L_pl:
    s_cmp_lt_u32 s21, s44
    s_cbranch_scc1 L_iss
    s_waitcnt vmcnt({12+npt})
''')
    if g1 < 4:
        a(f'''
    s_cmp_lt_u32 s21, 2
    s_cbranch_scc1 L_pl2
    s_waitcnt vmcnt({8+g1+npt})
L_pl2:
''')
    a('    s_barrier')
    def trreads(dst, off):
        a(f'''
    ds_read_b64_tr_b16 v[{dst}:{dst+1}], v{VA0} offset:{off}
    ds_read_b64_tr_b16 v[{dst+2}:{dst+3}], v{VA0} offset:{off+1024}
    ds_read_b64_tr_b16 v[{dst+4}:{dst+5}], v{VA1} offset:{off}
    ds_read_b64_tr_b16 v[{dst+6}:{dst+7}], v{VA1} offset:{off+1024}
''')
    def mf(acc, f, x):
        a(f'    v_mfma_f32_16x16x32_bf16 v[{acc}:{acc+3}], v[{f}:{f+3}], v[{x}:{x+3}], v[{acc}:{acc+3}]')
    X0 = FB + 16; X1 = FB + 20
    a(f'    ds_read_b128 v[{X0}:{X0+3}], v{VX}')
    trreads(FB, 0)
    a(f'    ds_read_b128 v[{X1}:{X1+3}], v{VX} offset:512')
    trreads(FB+8, 8192)
    a(f'''
    v_add_u32 v{VA0}, 16384, v{VA0}
    v_add_u32 v{VA1}, 16384, v{VA1}
    v_add_u32 v{VX}, 1024, v{VX}
    s_cmp_eq_u32 s21, 2
    s_waitcnt lgkmcnt(5)
''')
    mf(AG, FB, X0); mf(AU, FB+4, X0)
    a('    s_waitcnt lgkmcnt(0)')
    mf(AG, FB+8, X1); mf(AU, FB+12, X1)
    a(f'''
    s_cbranch_scc1 L_pdone
L_iss:
''' + ('    s_mov_b32 s20, 3\n' if g1 == 4 else f'    s_cmp_eq_u32 s21, 0\n    s_cselect_b32 s20, 3, {g1-1}\n') + f'''
    s_add_u32 s21, s21, 1
''' + ('    s_cmp_lt_i32 s20, 0\n    s_cbranch_scc1 L_pl\n' if g1 == 0 else '') + f'''
L_i2:
    buffer_load_dwordx4 v{VW2}, s[24:27], s22 offen {nt} lds
    s_add_u32 s22, s22, 16384
    s_addk_i32 m0, 0x1000
    s_sub_u32 s20, s20, 1
    s_cbranch_scc0 L_i2
    s_branch L_pl
L_pdone:
''')
    stamp(9)
    a(f'''
    ds_read_b128 v[{T1}:{T1+3}], v{VT}
    ds_read_b128 v[{T2}:{T2+3}], v{VT} offset:16
    ds_read_b128 v[{X0}:{X0+3}], v{VX}
    ds_read_b128 v[{X1}:{X1+3}], v{VX} offset:512
    s_waitcnt vmcnt({6+g1+npt})
    s_barrier
''')
    trreads(FB, 0)
    a('    s_waitcnt lgkmcnt(0)')
    mf(AG, FB, X0); mf(AU, FB+4, X0)
    a(f'''
    s_waitcnt vmcnt({4+g1})
    s_barrier
''')
    stamp(2)
    trreads(FB+8, 8192)
    a('    s_waitcnt lgkmcnt(2)')
    mf(AG, FB+8, X1)
    a('    s_waitcnt lgkmcnt(0)')
    mf(AU, FB+12, X1)
    a('    s_cmp_eq_u32 s18, 1\n    s_nop 6')
    for r in range(4):
        a(f'    v_cndmask_b32 v{8+r}, v{AG+r}, v{AU+r}, s[56:57]')
    for r in range(4):
        a(f'    v_add_u32 v{124+r}, {(M1+1)//2}, v{8+r}')
    for r in range(4):
        a(f'    v_bfi_b32 v{124+r}, v{VM1}, v{T1+r}, v{124+r}')
    a(f'    buffer_store_dwordx4 v[124:127], v{VG}, s[32:35], s71 offen {"sc1" if p1sc else ""}')
    if clean:
        a(f'    v_mov_b32 v27, v{VG}')
    stamp(3)
    def gather(lo, hi, fl=None):
        for i in range(lo, hi):
            a(f'    buffer_load_dwordx4 v[{G+4*i}:{G+4*i+3}], v{VG}, s[32:35], s{64+i} offen {fl or gld}')
    def h2():
        for _ in range(4 - g1):
            a(f'''
    buffer_load_dwordx4 v{VW2}, s[24:27], s22 offen {nt} lds
    s_add_u32 s22, s22, 16384
    s_addk_i32 m0, 0x1000
    s_cmp_eq_u32 s18, 1
''')
    h2()
    if gafter:
        a('    s_waitcnt vmcnt(0)')
    if gdelay:
        a(f'    s_sleep {gdelay}')
    for k in range(stag + 1):
        if k and gland and k == stag:
            a(f'    s_cbranch_scc0 L_gw\n    s_waitcnt vmcnt({7*k})\n    s_branch L_gw2\nL_gw:\n    s_waitcnt vmcnt({3*k})\nL_gw2:')
        elif k:
            a(f'    s_sleep {stagsl}')
        a(f'    s_cbranch_scc0 L_g{k}')
        gather(3, 7)
        a(f'L_g{k}:')
        gather(0, 3)
    if not gland:
        a(f'    s_waitcnt vmcnt({3*(stag+1)+(1 if g1 == 4 else 0)})')
    a('    s_barrier')
    stamp(4)
    for s in range(2):
        for c in range(4):
            for hh in range(2):
                d = F2 + 16*s + 4*c + 2*hh
                a(f'    ds_read_b64_tr_b16 v[{d}:{d+1}], v{VB+c} offset:{16384*s + 4096*hh}')
    a('L_poll1:')
    a('    s_waitcnt vmcnt(0)')
    for i in range(3):
        for k in range(4):
            a(f'    v_xor_b32 v{G+4*i+k}, v{T1+k}, v{G+4*i+k}')
    orchain(a, 5, range(G, G+12))
    a(f'''
    v_pk_add_f32 v[{AG}:{AG+1}], v[8:9], v[{G}:{G+1}]
    v_pk_add_f32 v[{AG+2}:{AG+3}], v[10:11], v[{G+2}:{G+3}]
    v_pk_add_f32 v[{AU}:{AU+1}], v[{G+4}:{G+5}], v[{G+8}:{G+9}]
    v_pk_add_f32 v[{AU+2}:{AU+3}], v[{G+6}:{G+7}], v[{G+10}:{G+11}]
    s_cbranch_scc1 L_more
L_hcalc:
    v_and_b32 v5, v{VM1}, v5
    v_pk_add_f32 v[{AG}:{AG+1}], v[{AG}:{AG+1}], v[{AU}:{AU+1}]
    v_pk_add_f32 v[{AG+2}:{AG+3}], v[{AG+2}:{AG+3}], v[{AU+2}:{AU+3}]
    v_cmp_ne_u32 vcc, 0, v5
    v_cvt_pk_bf16_f32 v6, v{AG}, v{AG+1}
    v_cvt_pk_bf16_f32 v7, v{AG+2}, v{AG+3}
    v_cvt_pk_bf16_f32 v5, v{AG+2}, v{AG+3}
    s_cbranch_vccnz L_retry1
''')
    stamp(10 - 0) if False else None
    a(f'''
    v_mov_b32_dpp v7, v6 row_ror:8 row_mask:0xf bank_mask:0x3
    v_mov_b32_dpp v6, v5 row_ror:8 row_mask:0xf bank_mask:0xc
    v_lshlrev_b32 v{AU}, 16, v7
    v_and_b32 v{AU+1}, 0xffff0000, v7
    v_lshlrev_b32 v{AG}, 16, v6
    v_and_b32 v{AG+1}, 0xffff0000, v6
    v_mul_f32 v{AG+2}, 0xbfb8aa3b, v{AG}
    v_mul_f32 v{AG+3}, 0xbfb8aa3b, v{AG+1}
    v_exp_f32 v{AG+2}, v{AG+2}
    v_exp_f32 v{AG+3}, v{AG+3}
    s_nop 0
    v_add_f32 v{AG+2}, 1.0, v{AG+2}
    v_add_f32 v{AG+3}, 1.0, v{AG+3}
    v_rcp_f32 v{AG+2}, v{AG+2}
    v_rcp_f32 v{AG+3}, v{AG+3}
    s_nop 0
    v_mul_f32 v{AG+2}, v{AG}, v{AG+2}
    v_mul_f32 v{AG+3}, v{AG+1}, v{AG+3}
    v_cvt_pk_bf16_f32 v6, v{AG+2}, v{AG+3}
    v_lshlrev_b32 v{AG}, 16, v6
    v_and_b32 v{AG+1}, 0xffff0000, v6
    v_mul_f32 v{AG}, v{AG}, v{AU}
    v_mul_f32 v{AG+1}, v{AG+1}, v{AU+1}
    v_cvt_pk_bf16_f32 v6, v{AG}, v{AG+1}
    ds_write_b32 v{VHW}, v6
    s_cmp_lg_u32 s19, 0
    s_waitcnt lgkmcnt(0)
    s_barrier
''')
    stamp(5)
    a(f'''
    ds_read_b128 v[{AG}:{AG+3}], v{VHR}
    ds_read_b128 v[{AU}:{AU+3}], v{VHR} offset:512
    s_cbranch_scc1 L_extra
    s_waitcnt lgkmcnt(1)
''')
    for s in range(2):
        if s == 1:
            a('    s_waitcnt lgkmcnt(0)')
        hb = AG if s == 0 else AU
        for c in (0, 2, 1, 3):
            cin = '0' if s == 0 else f'v[{A2+4*c}:{A2+4*c+3}]'
            f = F2 + s*16 + 4*c
            a(f'    v_mfma_f32_16x16x32_bf16 v[{A2+4*c}:{A2+4*c+3}], v[{f}:{f+3}], v[{hb}:{hb+3}], {cin}')
    a('    s_cmp_lg_u32 s54, 0\n    s_nop 4')
    for c in range(2):
        for r in range(4):
            a(f'    v_cndmask_b32 v{A2+4*c+r}, v{A2+4*c+r}, v{A2+8+4*c+r}, s[56:57]')
        for r in range(4):
            a(f'    v_bfi_b32 v{A2+4*c+r}, v{VM2}, v{T2+r}, v{A2+4*c+r}')
        a(f'    global_store_dwordx4 v{VP2+c}, v[{A2+4*c}:{A2+4*c+3}], s[52:53] sc1')
    stamp(6)
    CL = '    buffer_store_dwordx4 v[124:127], v27, s[32:35], s71 offen sc1'
    if clean == 1:
        a(CL)
    SL = f'    global_load_dwordx4 v[{G}:{G+3}], v{VRD}, s[52:53] offset:{1024*sj-3072} sc1'
    if sent == 1:
        a('    s_cbranch_scc1 L_wend')
        a(SL)
    a('    s_waitcnt vmcnt(0)')
    if sent != 1:
        a('    s_cbranch_scc1 L_end')
    a('    s_barrier')
    if sent == 2:
        a('L_sent0:')
        a(SL)
        a('    s_waitcnt vmcnt(0)')
    if sent:
        a(f'''
L_sent:
    v_xor_b32 v{G}, v{T2}, v{G}
    v_xor_b32 v{G+1}, v{T2+1}, v{G+1}
    v_and_or_b32 v5, v{G}, v{VM2}, 0
    v_and_or_b32 v5, v{G+1}, v{VM2}, v5
    v_cmp_ne_u32 vcc, 0, v5
    s_andn2_b64 vcc, vcc, s[46:47]
    s_cbranch_scc1 L_sretry
''')
    a('L_poll2:')
    for i in range(7):
        a(f'    global_load_dwordx4 v[{G+4*i}:{G+4*i+3}], v{VRD}, s[52:53] offset:{1024*i-3072} sc1')
    for i in range(7):
        a(f'    s_waitcnt vmcnt({6-i})')
        for k in range(4):
            a(f'    v_xor_b32 v{G+4*i+k}, v{T2+k}, v{G+4*i+k}')
        if i == 0:
            a(f'    v_or3_b32 v5, v{G}, v{G+1}, v{G+2}')
            a(f'    v_or_b32 v5, v5, v{G+3}')
        else:
            a(f'    v_or3_b32 v5, v5, v{G+4*i}, v{G+4*i+1}')
            a(f'    v_or3_b32 v5, v5, v{G+4*i+2}, v{G+4*i+3}')
            src = 8 if i > 1 else G
            a(f'    v_pk_add_f32 v[8:9], v[{src}:{src+1}], v[{G+4*i}:{G+4*i+1}]')
            a(f'    v_pk_add_f32 v[10:11], v[{src+2}:{src+3}], v[{G+4*i+2}:{G+4*i+3}]')
    a(f'''
    v_and_b32 v5, v{VM2}, v5
    v_cmp_ne_u32 vcc, 0, v5
    v_permlane32_swap_b32 v8, v10
    v_permlane32_swap_b32 v9, v11
    s_cbranch_vccnz L_retry2
''')
    stamp(7)
    a(f'''
    v_add_f32 v8, v8, v10
    v_add_f32 v9, v9, v11
    s_nop 1
    v_permlane16_swap_b32 v8, v9
    s_nop 0
    v_add_f32 v8, v8, v9
    s_nop 1
    v_add_f32_dpp v8, v8, v8 row_ror:8 row_mask:0xf bank_mask:0xf
    s_mov_b64 exec, s[56:57]
    v_cvt_pk_bf16_f32 v8, v8, v8
    global_store_short v{VOUT}, v8, s[48:49] {outsc}
''')
    if stamps:
        a('    s_waitcnt vmcnt(0)')
        stamp(8)
        a('    s_branch L_dump')
    a('L_end:')
    if stamps:
        stamp(7)
        a('''
    s_barrier
L_dump0:
    s_sleep 60
L_dump:
    s_mov_b64 exec, -1
    s_waitcnt lgkmcnt(0)
    s_add_u32 s92, s60, s72
    s_addc_u32 s93, 0, s73
    s_mov_b64 s[94:95], s[72:73]
''')
        for i in range(2*NST):
            a(f'    v_mov_b32 v{64+i}, s{72+i}')
        a(f'''
    s_lshl_b32 s12, s54, 8
    s_add_u32 s12, s12, s2
    s_mul_i32 s12, s12, {NST*8}
    s_add_u32 s12, s12, {STAMP_OFF}
    v_mov_b32 v5, s12
    s_mov_b64 exec, 1
''')
        for i in range(NST//2):
            a(f'    global_store_dwordx4 v5, v[{64+4*i}:{67+4*i}], s[52:53] offset:{16*i}')
    a(f'''
L_exit:
    s_endpgm
L_extra:
''' + (f'    s_sleep 6\n{CL}\n' if clean else '') + f'''
    s_cmp_lg_u32 s54, 0
    s_cbranch_scc1 {'L_dump0' if stamps else 'L_exit'}
    s_sleep {xsleep}                            ; polling back-off: no own stores to wait for
    s_branch {'L_sretry' if sent else 'L_poll2'}
''' + (f'''
L_wend:
    s_waitcnt vmcnt(0)
    s_branch L_end
L_sretry:
{SL}
    s_add_u32 s60, s60, 1
    s_cmp_lt_u32 s60, 0x400000
    s_waitcnt vmcnt(0)
    s_cbranch_scc1 L_sent
    s_endpgm
''' if sent else '') + f'''
L_retry2:
    s_add_u32 s60, s60, 1
    s_cmp_lt_u32 s60, 0x400000
    s_cbranch_scc1 L_poll2
    s_endpgm
L_more:
''')
    for i in range(3, 7):
        for k in range(4):
            a(f'    v_xor_b32 v{G+4*i+k}, v{T1+k}, v{G+4*i+k}')
    orchain(a, 5, range(G+12, G+28), first=False)
    for i in range(3, 7):
        acc = AG if i & 1 else AU
        a(f'    v_pk_add_f32 v[{acc}:{acc+1}], v[{acc}:{acc+1}], v[{G+4*i}:{G+4*i+1}]')
        a(f'    v_pk_add_f32 v[{acc+2}:{acc+3}], v[{acc+2}:{acc+3}], v[{G+4*i+2}:{G+4*i+3}]')
    a('    s_branch L_hcalc')
    if helpers:
        a(f'''
L_help:
    s_cmp_lg_u32 s54, 0
    s_cbranch_scc1 L_exit
    s_barrier
    ds_read_b128 v[{T1}:{T1+3}], v{VT}
    ds_read_b128 v[{T2}:{T2+3}], v{VT} offset:16
L_help1:
    s_sleep 4
    buffer_load_dwordx4 v[{G}:{G+3}], v{VG}, s[32:35], s64 offen sc1
    s_add_u32 s60, s60, 1
    s_cmp_gt_u32 s60, 200
    s_waitcnt vmcnt(0) lgkmcnt(0)
    s_cbranch_scc1 L_poll2
    v_xor_b32 v5, v{T1}, v{G}
    v_and_b32 v5, v{VM1}, v5
    v_cmp_ne_u32 vcc, 0, v5
    s_cbranch_vccnz L_help1
    s_sleep 30
    s_branch L_poll2
''')
    a(f'''
L_aux:
    s_setprio 3
    v_mov_b32 v8, 0
    s_getreg_b32 s20, hwreg(HW_REG_XCC_ID)
    s_waitcnt lgkmcnt(0)
''' + (f'''
    s_and_b32 s21, s2, 127
    s_lshl_b32 s21, s21, 7
    v_mov_b32 v9, s21
    global_load_dword v10, v9, s[48:49] {otouch}
''' if otouch is not None else '') + f'''
    s_sleep {auxsleep}                            ; polling back-off before reading the nonce
    global_load_dwordx2 v[28:29], v8, s[50:51] sc1
    s_sleep {aux2}
    global_load_dwordx2 v[30:31], v8, s[50:51] sc1
    s_and_b32 s20, s20, {0 if p1sc else 7}
    s_lshl_b32 s20, s20, 7
    s_cmp_eq_u32 s18, 1
    s_cbranch_scc1 L_aux0
    s_barrier
    s_barrier
L_aux0:
    s_waitcnt vmcnt(1)
    v_cmp_lt_i32 vcc, -1, v29
    s_cbranch_vccz L_aux2
L_aux1:
    s_waitcnt vmcnt(0)
    v_mov_b32 v28, v30
    v_mov_b32 v29, v31
    v_cmp_lt_i32 vcc, -1, v31             ; nonce not yet valid
    s_cbranch_vccnz L_nretry
L_aux2:
    v_and_b32 v{T1}, {M1}, v28
    v_bfe_u32 v{T1+1}, v28, 10, 10
    v_bfe_u32 v{T1+2}, v28, 20, 10
    v_alignbit_b32 v5, v29, v28, 30
    v_and_b32 v5, {M1}, v5
    v_xor_b32 v{T1+3}, s20, v5
    v_and_b32 v{T2}, {M2}, v28
    v_bfe_u32 v{T2+1}, v28, 12, 12
    v_alignbit_b32 v5, v29, v28, 24
    v_and_b32 v{T2+2}, {M2}, v5
    v_bfe_u32 v{T2+3}, v29, 4, 12
    ds_write_b128 v{VT}, v[{T1}:{T1+3}]
    ds_write_b128 v{VT}, v[{T2}:{T2+3}] offset:16
    s_waitcnt lgkmcnt(0)
''')
    stamp(3)
    if stamps:
        a('    s_barrier\n    s_barrier\n    s_barrier\n    s_barrier\n    s_barrier\n    s_cmp_lg_u32 s19, 0\n    s_cbranch_scc1 L_dump0\n    s_branch L_end')
    a(f'''
    s_endpgm
''' + ('' if hotretry else 'L_codeend:\n') + f'''
L_nretry:
    global_load_dwordx2 v[30:31], v8, s[50:51] sc1
    s_add_u32 s60, s60, 1
    s_cmp_lt_u32 s60, 0x400000
    s_cbranch_scc1 L_aux1
    s_endpgm
L_retry1:
    s_cmp_lt_u32 s60, {0x7fffffff if p1sc else KF}
    s_cbranch_scc1 L_r1a
    s_getreg_b32 s20, hwreg(HW_REG_XCC_ID)
    s_and_b32 s20, s20, 7
    s_lshl_b32 s20, s20, 7
    v_xor_b32 v{T1+3}, s20, v{T1+3}       ; toggle tag between plain (xcc-mixed) and safe form
    v_xor_b32 v{VG}, {P1_SAFE}, v{VG}
    s_cmp_eq_u32 s60, {KF}
    s_cbranch_scc0 L_r1a
''')
    for r in range(4):
        a(f'    v_bfi_b32 v{AG+r}, v{VM1}, v{T1+r}, v{124+r}')
    a(f'''
    buffer_store_dwordx4 v[{AG}:{AG+3}], v{VG}, s[32:35], s71 offen sc1
    s_waitcnt vmcnt(0)
L_r1a:
    s_add_u32 s60, s60, 1
    s_cmp_ge_u32 s60, 0x400000
    s_cbranch_scc1 L_exit
    s_cmp_eq_u32 s18, 1
    s_cbranch_scc0 L_r1b
''')
    gather(3, 7, 'sc1')
    a('L_r1b:')
    gather(0, 3, 'sc1')
    a('    s_branch L_poll1')
    if hotretry:
        a('L_codeend:')
    a(RODATA)
    a(kdesc(KNAME, 128, 100))
    open(fname, 'w').write(a.text())
if __name__ == '__main__':
    B = dict(gland=True, KF=10, rmap=True, xsleep=26, ldfirst=True)
    V = dict(
      r=dict(),
      t1=dict(sent=1),
      t2=dict(sent=2),
      t1x=dict(sent=1, xsleep=10),
      lf=dict(ldfirst=True),
      a6=dict(auxsleep=6, aux2=10),
      lfgn=dict(ldfirst=True, gld='nt'),
    )
    for k, v in V.items():
        gen(f'v7_{k}.s', **{**B, **v})
        gen(f'v7_{k}_st.s', stamps=True, **{**B, **v})
    HDR = '''; SwiGLU decode (B=8, D=1024, F=3584), one fused launch.  out = (silu(x@w1) * (x@w3)) @ w2
'''
    t = open('v7_r.s').read().replace('; generated\n', HDR)
    import re
    t = re.sub(r'\n\n+', '\n', t)
    open('final.s', 'w').write(t)
```
